```python
import torch

def _softmax(x, axis=-1):
    return torch.softmax(x, dim=axis)
def _gelu(x):
    return torch.nn.functional.gelu(x, approximate="tanh")
def _silu(x):
    return torch.nn.functional.silu(x)
def _sigmoid(x):
    return torch.sigmoid(x)
def _layernorm(x, axis=-1, eps=1e-5):
    m = x.mean(dim=axis, keepdim=True)
    v = x.var(dim=axis, keepdim=True, unbiased=False)
    return (x - m) / torch.sqrt(v + eps)
def _scatter_add(tgt, idx, src, axis=0):
    return tgt.clone().index_add_(axis, idx, src)
def _segment_sum(src, seg, n):
    out = torch.zeros((n,) + src.shape[1:], dtype=src.dtype)
    return out.index_add_(0, seg, src)
def _pad(x, pw):
    flat = tuple(v for pair in reversed(pw) for v in pair)
    return torch.nn.functional.pad(x, flat)

kernel_name = 'concat_heads__ssm_conv_h3__softmax_full_mha__prompt'

def setup_inputs():

    _w = (lambda a: (lambda t: t.to(torch.bfloat16) if t.is_floating_point() else t)(torch.as_tensor(a)))
    def _A_setup():
        B, S, D = 1, 2048, 1024
        ks = 4
        return {
            "q": _w((lambda *s: torch.randn(*s, dtype=torch.bfloat16) * 0.05)(B, S, D)),
            "k": _w((lambda *s: torch.randn(*s, dtype=torch.bfloat16) * 0.8)(B, S, D)),
            "v": _w((lambda *s: torch.randn(*s, dtype=torch.bfloat16) * 0.8)(B, S, D)),
            "shift_k": _w((lambda *s: torch.randn(*s, dtype=torch.bfloat16) * 0.8)(D, ks) * 0.5),
            "ssm_k": _w((lambda *s: torch.randn(*s, dtype=torch.bfloat16) * 0.8)(D, S) * (1.0 / S ** 0.5)),
            "ssm_D": _w((lambda *s: torch.randn(*s, dtype=torch.bfloat16) * 0.8)(D)),
        }
    _A_in = _A_setup()

    def _B_setup():
        B, S, D = 1, 2048, 1024
        return {
            "x": _w((lambda *s: torch.randn(*s, dtype=torch.bfloat16) * 0.2)(B, S, D)),
            "wqkv": _w((lambda *s: torch.randn(*s, dtype=torch.bfloat16) * 0.2)(D, 3 * D)),
            "wo": _w((lambda *s: torch.randn(*s, dtype=torch.bfloat16) * 0.05)(D, D)),
        }
    _B_in = _B_setup()

    return {
        "A_q": _A_in["q"],
        "A_k": _A_in["k"],
        "A_v": _A_in["v"],
        "A_shift_k": _A_in["shift_k"],
        "A_ssm_k": _A_in["ssm_k"],
        "A_ssm_D": _A_in["ssm_D"],
        "B_x": _B_in["x"],
        "B_wqkv": _B_in["wqkv"],
        "B_wo": _B_in["wo"],
    }

def reference(A_q, A_k, A_v, A_shift_k, A_ssm_k, A_ssm_D, B_x, B_wqkv, B_wo):
    def _A_ref(q, k, v, shift_k, ssm_k, ssm_D):
        B, S, D = q.shape
        ks = shift_k.shape[-1]
        k_pad = _pad(k, ((0, 0), (ks - 1, 0), (0, 0)))
        k_shift = torch.zeros_like(k)
        for t in range(ks):
            k_shift = k_shift + k_pad[:, t:t + S, :] * shift_k[:, ks - 1 - t][None, None, :]
        kv = k_shift * v
        L = 2 * S
        kv_pad = _pad(kv, ((0, 0), (0, S), (0, 0)))
        kf_pad = _pad(ssm_k, ((0, 0), (0, S)))
        kv_f = (lambda x, axes=(-2,-1): torch.fft.rfft2(x.float(), dim=axes))(kv_pad[:, None, :, :], axes=(1, 2))
        kf_f = (lambda x, axes=(-2,-1): torch.fft.rfft2(x.float(), dim=axes))(kf_pad[:, None, :], axes=(1, 2))
        kf_f = (lambda x, *d: x.permute(*d))(kf_f, 1, 2, 0)
        y_f = kv_f * kf_f[None, :, :, :]
        y = (lambda x, s, axes=(-2,-1): torch.fft.irfft2(x, s=s, dim=axes).to(torch.bfloat16))(y_f, (1, L), axes=(1, 2))[:, 0, :S, :]
        y = y + kv * ssm_D[None, None, :]
        return q * y

    def _B_ref(x, wqkv, wo):
        B, S, D = x.shape
        H = 32; Dh = D // H
        qkv = (lambda x, *d: x.permute(*d))((x @ wqkv).reshape(B, S, 3, H, Dh), 2, 0, 3, 1, 4)
        q, k, v = qkv[0], qkv[1], qkv[2]
        scale = Dh ** -0.5
        scores = torch.einsum("bhqd,bhkd->bhqk", q, k) * scale
        p = _softmax(scores, axis=-1)
        o = torch.einsum("bhqk,bhkd->bhqd", p, v)
        return (lambda x, *d: x.permute(*d))(o, 0, 2, 1, 3).reshape(B, S, D) @ wo

    a = _A_ref(A_q, A_k, A_v, A_shift_k, A_ssm_k, A_ssm_D)
    b = _B_ref(B_x, B_wqkv, B_wo)
    return torch.concatenate([a, b], axis=-1)
```

```python
import re

TRANS = ("v_exp_f32", "v_log_f32", "v_rcp_f32", "v_rsq_f32", "v_sqrt_f32", "v_sin_f32", "v_cos_f32", "v_exp_f16", "v_rcp_iflag_f32")

def parse_regs(tok):
    tok = tok.strip()
    tok = tok.lstrip("-")
    m = re.match(r"^abs\((.*)\)$", tok)
    if m: tok = m.group(1)
    m = re.match(r"^\|(.*)\|$", tok)
    if m: tok = m.group(1)
    m = re.match(r"^([vas])\[(\d+):(\d+)\]$", tok)
    if m:
        return [(m.group(1), i) for i in range(int(m.group(2)), int(m.group(3)) + 1)]
    m = re.match(r"^([vas])(\d+)$", tok)
    if m:
        return [(m.group(1), int(m.group(2)))]
    if tok == "vcc": return [("s", 106), ("s", 107)]
    if tok == "exec": return [("s", 126), ("s", 127)]
    if tok == "m0": return [("s", 124)]
    return []

class Ins:
    def __init__(self, text):
        self.text = text
        t = text.split(";")[0].strip()
        self.is_label = t.endswith(":")
        self.label = t[:-1] if self.is_label else None
        self.op = "" if self.is_label else t.split()[0] if t else ""
        self.reads = set(); self.writes = set()
        self.kind = None; self.passes = 0
        self.srcC = set(); self.srcAB = set()
        self.target = None
        self.ws = 1
        if self.is_label or not t or t.startswith("."):
            self.ws = 0; self.kind = "none"; return
        rest = t[len(self.op):].strip()
        ops = []
        depth = 0; cur = ""
        for ch in rest:
            if ch in "[(": depth += 1
            if ch in "])": depth -= 1
            if ch == "," and depth == 0:
                ops.append(cur.strip()); cur = ""
            else: cur += ch
        if cur.strip(): ops.append(cur.strip())
        mods = []
        if ops:
            parts = ops[-1].split()
            ops[-1] = parts[0] if parts else ""
            mods = parts[1:]
        self.ops = ops; self.mods = mods
        op = self.op
        R = lambda i: set(parse_regs(ops[i])) if i < len(ops) else set()
        if op == "s_nop":
            self.kind = "nop"; self.ws = int(ops[0], 0) + 1
        elif op.startswith("v_mfma"):
            self.kind = "mfma"
            self.writes = R(0); self.srcAB = R(1) | R(2); self.srcC = R(3)
            self.reads = self.srcAB | self.srcC
            if "32x32x16" in op: self.passes = 8
            elif "16x16x32" in op: self.passes = 4
            elif "4x4x4" in op: self.passes = 2
            else: raise Exception("unknown mfma " + op)
        elif op.startswith("v_cmp"):
            self.kind = "valu"
            self.writes = R(0); self.reads = R(1) | R(2)
            if op.startswith("v_cmpx"): self.writes |= {("s",126),("s",127)}
        elif op.startswith("v_permlane") and "swap" in op:
            self.kind = "valu"; self.sub = "permlane"
            self.writes = R(0) | R(1); self.reads = R(0) | R(1)
        elif op in ("v_readfirstlane_b32", "v_readlane_b32"):
            self.kind = "valu"; self.writes = R(0); self.reads = set().union(*[R(i) for i in range(1, len(ops))])
        elif op.startswith("v_"):
            self.kind = "valu"
            self.writes = R(0)
            st = 1
            if op.startswith(("v_add_co", "v_sub_co", "v_addc_co", "v_subb_co", "v_div_scale", "v_mad_u64_u32")):
                self.writes |= R(1); st = 2
            self.reads = set().union(*[R(i) for i in range(st, len(ops))]) if len(ops) > st else set()
            if op.startswith(("v_fmac", "v_dot2c", "v_writelane")) or "UNUSED_PRESERVE" in t: self.reads |= R(0)
            if op.startswith("v_cndmask") and len(ops) == 3: self.reads |= set(parse_regs("vcc"))
        elif op.startswith("ds_read") or op.startswith("ds_bpermute") or op.startswith("ds_permute") or op.startswith("ds_swizzle"):
            self.kind = "ds"; self.writes = R(0); self.reads = set().union(*[R(i) for i in range(1, len(ops))])
        elif op.startswith("ds_write"):
            self.kind = "ds"; self.reads = set().union(*[R(i) for i in range(len(ops))])
        elif op.startswith("buffer_load") or op.startswith("global_load"):
            self.kind = "vmem"
            if "lds" in mods or "_lds_" in op:
                self.reads = set().union(*[R(i) for i in range(len(ops))]) | {("s", 124)}
                self.sub = "ldsdma"
            else:
                self.writes = R(0); self.reads = set().union(*[R(i) for i in range(1, len(ops))])
        elif op.startswith("buffer_store") or op.startswith("global_store") or op.startswith("buffer_atomic") or op.startswith("global_atomic"):
            self.kind = "vmem"; self.reads = set().union(*[R(i) for i in range(len(ops))])
            self.sub = "store"
            self.store_data = R(0) if op.startswith("buffer") else R(1)
            self.wide = op.endswith("x4") or op.endswith("x3")
        elif op.startswith("s_cbranch") or op == "s_branch":
            self.kind = "branch"; self.target = ops[0]
            if "vcc" in op: self.reads = set(parse_regs("vcc"))
            if "exec" in op: self.reads = set(parse_regs("exec"))
        elif op in ("s_endpgm",):
            self.kind = "end"
        elif op.startswith("s_load") or op.startswith("s_memtime") or op.startswith("s_memrealtime") or op.startswith("s_buffer_load"):
            self.kind = "smem"; self.writes = R(0); self.reads = set().union(*[R(i) for i in range(1, len(ops))]) if len(ops) > 1 else set()
        elif op.startswith("s_cmp") or op in ("s_waitcnt", "s_barrier", "s_setprio", "s_sleep"):
            self.kind = "salu"; self.reads = set().union(*[R(i) for i in range(len(ops))]) if ops else set()
        elif op.startswith("s_"):
            self.kind = "salu"; self.writes = R(0); self.reads = set().union(*[R(i) for i in range(1, len(ops))]) if len(ops) > 1 else set()
            if "saveexec" in op: self.writes |= set(parse_regs("exec")); self.reads |= set(parse_regs("exec"))
        else:
            raise Exception("cannot parse: " + text)
        self.sub = getattr(self, "sub", None)

def vec(regs): return {r for r in regs if r[0] in "va"}
def sca(regs): return {r for r in regs if r[0] == "s"}

D_VALU = {2: 5, 4: 8, 8: 12}
D_AB = {2: 5, 4: 8, 8: 12}
D_CPART = {2: 4, 4: 6, 8: 10}
WAR_C = {2: 1, 4: 3, 8: 7}

def need(p, c):
    n = 0
    if p.kind == "mfma":
        D = p.writes
        if c.kind == "mfma":
            if D & c.srcAB: n = max(n, D_AB[p.passes])
            if D & c.srcC:
                if D == c.srcC and p.passes == c.passes: n = max(n, 2 if p.passes == 2 else 0)
                else: n = max(n, D_CPART[p.passes])
            elif D & c.writes:
                n = max(n, D_CPART[p.passes])
        elif c.kind in ("valu", "vmem", "ds"):
            if D & (c.reads | c.writes): n = max(n, D_VALU[p.passes])
        if c.kind == "valu" and (p.srcC & c.writes): n = max(n, WAR_C[p.passes])
        if c.kind in ("ds", "vmem") and (p.srcC & c.writes): n = max(n, WAR_C[p.passes])
    if p.kind == "valu":
        if c.kind == "mfma" and (vec(p.writes) & c.reads): n = max(n, 2)
        if c.kind == "mfma" and (("s",126) in p.writes): n = max(n, 4)
        if p.op in TRANS and c.kind == "valu" and c.op not in TRANS and (p.writes & (c.reads)): n = max(n, 1)
        if p.op in TRANS and c.kind in ("mfma",) and (p.writes & c.reads): n = max(n, 2)
        if c.kind == "valu" and c.sub == "permlane" and (vec(p.writes) & c.reads): n = max(n, 2)
        if c.op in ("v_readfirstlane_b32", "v_readlane_b32") and (vec(p.writes) & c.reads): n = max(n, 1)
        if sca(p.writes):
            if c.kind == "vmem" and (sca(p.writes) & c.reads): n = max(n, 5)
            if c.kind == "valu" and (sca(p.writes) & c.reads): n = max(n, 2)
            if c.op in ("v_readlane_b32", "v_writelane_b32") and (sca(p.writes) & c.reads): n = max(n, 4)
            if c.kind in ("salu", "branch") and (sca(p.writes) & c.reads): n = max(n, 1)
        if "dpp" in c.text and c.kind == "valu" and (vec(p.writes) & c.reads): n = max(n, 2)
        if ("sdwa" in p.op or "op_sel" in p.text) and c.kind == "valu" and (p.writes & (c.reads | c.writes)): n = max(n, 1)
    if p.kind == "salu":
        if ("s", 124) in p.writes and c.sub == "ldsdma": n = max(n, 1)
    if p.kind == "vmem" and p.sub == "store" and p.wide:
        if p.store_data & c.writes:
            n = max(n, 2 if c.kind in ("valu", "mfma") else 1)
    return n

class Asm:
    def __init__(self):
        self.lines = []
    def __call__(self, text):
        for l in text.split("\n"):
            l = l.strip()
            if l: self.lines.append(l)
    def label(self, n): self.lines.append(n + ":")
    def c(self, t): self.lines.append("; " + t)
    def text(self): return "\n".join(self.lines) + "\n"

def pad_hazards(lines, verbose=False, maxlook=14):
    total = 0
    while True:
        ins = [Ins(l) if not l.startswith(";") else Ins("") for l in lines]
        n = len(ins)
        labels = {x.label: i for i, x in enumerate(ins) if x.is_label}
        preds = [[] for _ in range(n)]
        for i, x in enumerate(ins):
            if i + 1 < n and not (x.op == "s_branch" or x.kind == "end"):
                preds[i + 1].append(i)
            if x.kind == "branch":
                preds[labels[x.target]].append(i)
        fixes = []
        last_fix = -100
        for i, c in enumerate(ins):
            if c.kind in ("none", "nop"): continue
            if i - last_fix < 2 * maxlook + 8: continue
            stack = [(p, 0) for p in preds[i]]
            seen = {}
            worst = 0
            while stack:
                j, d = stack.pop()
                if j in seen and seen[j] <= d: continue
                seen[j] = d
                p = ins[j]
                if p.kind not in ("none", "nop"):
                    nd = need(p, c)
                    if nd > d: worst = max(worst, nd - d)
                d2 = d + p.ws
                if d2 < maxlook:
                    for q in preds[j]: stack.append((q, d2))
            if worst > 0:
                fixes.append((i, worst)); last_fix = i
        if not fixes: break
        for i, w in reversed(fixes):
            if verbose: print("pad %d before: %s" % (w, lines[i]))
            total += w
            add = []
            while w > 0:
                k = min(w, 16); add.append("s_nop %d" % (k - 1)); w -= k
            lines = lines[:i] + add + lines[i:]
    return lines, total

class Regs:
    def __init__(self, start=0, prefix="v"):
        self.n = start; self.prefix = prefix; self.names = {}
    def alloc(self, count=1, align=1, name=None):
        self.n = (self.n + align - 1) // align * align
        r = self.n; self.n += count
        if name: self.names[name] = r
        return r

def vr(base, cnt=1, p="v"):
    return f"{p}{base}" if cnt == 1 else f"{p}[{base}:{base+cnt-1}]"
def sr(base, cnt=1): return vr(base, cnt, "s")
def ar(base, cnt=1): return vr(base, cnt, "a")

def kernel_desc(name, vgpr, sgpr, accum=None):
    if accum is None: accum = (vgpr + 3) // 4 * 4
    return f""".p2align 6
.amdhsa_kernel {name}
  .amdhsa_next_free_vgpr {vgpr}
  .amdhsa_next_free_sgpr {sgpr}
  .amdhsa_accum_offset {accum}
  .amdhsa_group_segment_fixed_size 0
  .amdhsa_kernarg_size 96
  .amdhsa_user_sgpr_count 2
  .amdhsa_user_sgpr_kernarg_segment_ptr 1
  .amdhsa_system_sgpr_workgroup_id_x 1
.end_amdhsa_kernel
"""
```

```python
from asmlib import *
from gemm import WS_Q, WS_K, WS_V, WS_O, srd, f2u

THRESH = 4096.0

def gen_attn(name):
    a = Asm()
    V = Regs(1)
    S = [V.alloc(16, 4) for _ in range(2)]
    O = V.alloc(16, 4)
    NM = V.alloc(16, 4)
    P = [V.alloc(8, 4) for _ in range(2)]
    Q = [V.alloc(4, 4) for _ in range(2)]
    KF = [[V.alloc(4, 4) for kk in range(2)] for u in range(2)]
    VF = [V.alloc(4, 4) for ks in range(4)]
    T = [V.alloc(4, 4) for _ in range(2)]
    ONE = V.alloc(2, 2)
    E = V.alloc(8, 2)
    L = V.alloc()
    ka = [V.alloc() for kk in range(2)]
    va = [V.alloc() for ks in range(4)]
    gd = V.alloc()
    lane = V.alloc(); t0 = V.alloc(); t1 = V.alloc(); t2 = V.alloc(); t3 = V.alloc()
    SW = 8
    s_w = 12; s_h = 13; s_qb = 14; s_t = 15; s_c = 16; s_so = 17; s_lds = 18; s_it = 19; s_thr = 20; s_hb = 21

    a(f".globl {name}\n.p2align 8\n.type {name},@function\n{name}:")
    a(f"s_cmp_ge_u32 s2, 256\ns_cbranch_scc1 L_{name}_end")
    a("s_load_dwordx2 s[4:5], s[0:1], 88")
    a(f"v_lshrrev_b32 v{t0}, 6, v0")
    a(f"v_and_b32 v{lane}, 63, v0")
    a(f"v_readfirstlane_b32 s{s_w}, v{t0}")
    a(f"s_and_b32 s{s_h}, s2, 7\ns_lshl_b32 s{s_h}, s{s_h}, 2\ns_lshr_b32 s{s_t}, s2, 6\ns_add_u32 s{s_h}, s{s_h}, s{s_t}")
    a(f"s_bfe_u32 s{s_qb}, s2, 0x30003")
    a(f"s_lshl_b32 s{s_hb}, s{s_h}, 17")
    a(f"s_mov_b32 s{s_thr}, {f2u(THRESH)}")
    a("s_waitcnt lgkmcnt(0)")
    srd(a, SW, 4, 16 << 20)
    a(f"v_and_b32 v{t0}, 31, v{lane}")
    a(f"v_lshrrev_b32 v{t1}, 5, v{lane}")
    a(f"s_lshl_b32 s{s_t}, s{s_qb}, 3\ns_add_u32 s{s_t}, s{s_t}, s{s_w}\ns_lshl_b32 s{s_t}, s{s_t}, 5")
    a(f"v_add_u32 v{t2}, s{s_t}, v{t0}")
    a(f"v_lshlrev_b32 v{t2}, 6, v{t2}")
    a(f"v_lshl_add_u32 v{t2}, v{t1}, 4, v{t2}")
    a(f"buffer_load_dwordx4 {vr(Q[0],4)}, v{t2}, s[{SW}:{SW+3}], s{s_hb} offen")
    a(f"buffer_load_dwordx4 {vr(Q[1],4)}, v{t2}, s[{SW}:{SW+3}], s{s_hb} offen offset:32")
    a(f"v_lshrrev_b32 v{t2}, 4, v{lane}")
    a(f"v_and_b32 v{t3}, 3, v{lane}")
    a(f"v_xor_b32 v{t3}, v{t3}, v{t2}")
    a(f"v_lshrrev_b32 v{gd}, 2, v{lane}")
    a(f"v_lshlrev_b32 v{gd}, 6, v{gd}")
    a(f"v_lshl_add_u32 v{gd}, v{t3}, 4, v{gd}")
    a(f"v_add_u32 v{gd}, {WS_K}, v{gd}")
    a(f"s_lshl_b32 s{s_c}, s{s_w}, 2\ns_and_b32 s{s_c}, s{s_c}, 4")
    a(f"v_xor_b32 v{t2}, s{s_c}, v{t2}")
    a(f"v_and_b32 v{t3}, 7, v{lane}")
    a(f"v_xor_b32 v{t3}, v{t3}, v{t2}")
    a(f"v_lshrrev_b32 v{t2}, 3, v{lane}")
    a(f"v_lshlrev_b32 v{t2}, 7, v{t2}")
    a(f"v_lshl_add_u32 v{t2}, v{t3}, 4, v{t2}")
    a(f"v_add_u32 v{t2}, {WS_V - 4096 - 4096}, v{t2}")
    a(f"s_cmp_ge_u32 s{s_w}, 4\ns_cselect_b64 vcc, -1, 0")
    a(f"v_cndmask_b32 v{gd}, v{gd}, v{t2}, vcc")
    a(f"s_lshl_b32 s{s_lds}, s{s_w}, 10")
    a(f"v_add_u32 v{gd}, s{s_lds}, v{gd}")
    a(f"s_mov_b32 s{s_so}, s{s_hb}")
    def dma(buf):
        return [f"s_add_u32 m0, s{s_lds}, {buf*8192}", f"buffer_load_dwordx4 v{gd}, s[{SW}:{SW+3}], s{s_so} offen lds", f"s_add_u32 s{s_so}, s{s_so}, 4096"]
    for st in range(4):
        for x in dma(st): a(x)
    a(f"v_and_b32 v{t2}, 19, v{lane}")
    a(f"v_and_b32 v{t3}, 4, v{lane}")
    a(f"v_lshl_or_b32 v{t2}, v{t3}, 1, v{t2}")
    a(f"v_and_b32 v{t3}, 8, v{lane}")
    a(f"v_lshrrev_b32 v{t3}, 1, v{t3}")
    a(f"v_or_b32 v{t2}, v{t2}, v{t3}")
    a(f"v_bfe_u32 v{t3}, v{t2}, 2, 2")
    a(f"v_xor_b32 v{t3}, v{t3}, v{t1}")
    a(f"v_lshlrev_b32 v{t2}, 6, v{t2}")
    a(f"v_lshl_add_u32 v{ka[0]}, v{t3}, 4, v{t2}")
    a(f"v_xor_b32 v{ka[1]}, 32, v{ka[0]}")
    a(f"v_bfe_u32 v{t3}, v{lane}, 1, 3")
    a(f"v_xor_b32 v{t3}, v{t3}, v{t1}")
    a(f"v_lshlrev_b32 v{t2}, 7, v{t0}")
    a(f"v_lshl_add_u32 v{va[0]}, v{t3}, 4, v{t2}")
    a(f"v_add_u32 v{va[0]}, 4096, v{va[0]}")
    for ks in range(1, 4): a(f"v_xor_b32 v{va[ks]}, {32*ks}, v{va[0]}")
    for i in range(16): a(f"v_mov_b32 v{O+i}, 0")
    for i in range(8): a(f"v_mov_b32 v{P[1]+i}, 0")
    for i in range(8): a(f"v_mov_b32 v{VF[2]+i}, 0")
    a(f"v_mov_b32 v{ONE}, 0x3f803f80\nv_mov_b32 v{ONE+1}, 0x3f803f80\nv_mov_b32 v{L}, 0")
    for i in range(4): a(f"v_mov_b32 v{T[1]+i}, 0")
    def kread(u, buf): return [f"ds_read_b128 {vr(KF[u][kk],4)}, v{ka[kk]} offset:{buf*8192 + u*2048}" for kk in range(2)]
    def vread(h, buf): return [f"ds_read_b128 {vr(VF[2*h+j],4)}, v{va[2*h+j]} offset:{buf*8192}" for j in range(2)]
    def qk(u, cin):
        return [f"v_mfma_f32_32x32x16_bf16 {vr(S[u],16)}, {vr(KF[u][0],4)}, {vr(Q[0],4)}, {cin}",
                f"v_mfma_f32_32x32x16_bf16 {vr(S[u],16)}, {vr(KF[u][1],4)}, {vr(Q[1],4)}, {vr(S[u],16)}"]
    def pv(u):
        return [f"v_mfma_f32_32x32x16_bf16 {vr(O,16)}, {vr(VF[2*u+j],4)}, {vr(P[u]+4*j,4)}, {vr(O,16)}" for j in range(2)]
    def rowmax(dst, u):
        s = S[u]
        a(f"v_max3_f32 v{dst}, v{s}, v{s+1}, v{s+2}")
        for i in range(3, 15, 2): a(f"v_max3_f32 v{dst}, v{dst}, v{s+i}, v{s+i+1}")
        a(f"v_max_f32 v{dst}, v{dst}, v{s+15}")
        a(f"v_mov_b32 v{t2}, v{dst}")
        a(f"v_permlane32_swap_b32 v{dst}, v{t2}")
        a(f"v_max_f32 v{dst}, v{dst}, v{t2}")
    a("s_waitcnt vmcnt(3)")
    a("s_barrier")
    for x in kread(0, 0) + kread(1, 0): a(x)
    a("s_waitcnt lgkmcnt(0)")
    for x in qk(0, "0"): a(x)
    rowmax(t3, 0)
    for i in range(16): a(f"v_sub_f32 v{NM+i}, 0, v{t3}")
    for i in range(16): a(f"v_sub_f32 v{S[0]+i}, v{S[0]+i}, v{t3}")
    a(f"s_mov_b32 s{s_it}, 0")

    NEARLY = 4
    def ex(u, i): return f"v_exp_f32 v{E + i % 8}, v{S[u]+i}"
    def cv(u, i): return f"v_cvt_pk_bf16_f32 v{P[u]+i}, v{E + (2*i) % 8}, v{E + (2*i+1) % 8}"
    def m4(u, j): return f"v_mfma_f32_4x4x4_16b_bf16 {vr(T[u],4)}, {vr(ONE,2)}, {vr(P[u]+2*j,2)}, {'0' if j == 0 else vr(T[u],4)}"
    slow = []
    def part(u, buf, tag, pre):
        p = u ^ 1
        for x in pre: a(x)
        rd = kread(u, buf) + vread(u, buf)
        a(m4(p, 3))
        a(ex(u, 0)); a(ex(u, 1)); a(rd[0]); a(ex(u, 2)); a(rd[1]); a(ex(u, 3))
        a(f"v_cmp_nle_f32 vcc, v{T[p]}, s{s_thr}" if False else f"v_cmp_nge_f32 vcc, s{s_thr}, v{T[p]}")
        a(f"s_cbranch_vccnz L_{name}_slow{tag}")
        a(f"L_{name}_back{tag}:")
        mf = qk(p, vr(NM, 16)) + pv(p)
        seq = [mf[0], f"v_add_f32 v{L}, v{L}, v{T[p]}", cv(u, 0), ex(u, 4), rd[2], cv(u, 1), ex(u, 5), ex(u, 6),
               mf[1], ex(u, 7), rd[3], cv(u, 2), m4(u, 0), ex(u, 8), cv(u, 3), ex(u, 9),
               mf[2], ex(u, 10), ex(u, 11), cv(u, 4), m4(u, 1), ex(u, 12), cv(u, 5), ex(u, 13),
               mf[3], ex(u, 14), ex(u, 15), cv(u, 6), m4(u, 2), cv(u, 7)]
        for x in seq: a(x)
        slow.append((tag, p, u))
    a(f"L_{name}_loop:")
    for it in range(4):
        buf = (it + 1) % 4
        part(0, buf, f"A{it}", ["s_waitcnt vmcnt(2) lgkmcnt(0)", "s_barrier"] + dma(it))
        part(1, buf, f"B{it}", ["s_waitcnt lgkmcnt(0)"])
    a(f"s_add_u32 s{s_it}, s{s_it}, 1\ns_cmp_lt_u32 s{s_it}, 8\ns_cbranch_scc1 L_{name}_loop")
    a("s_waitcnt lgkmcnt(0)")
    a(m4(1, 3))
    a(f"v_cmp_nge_f32 vcc, s{s_thr}, v{T[1]}")
    a(f"s_cbranch_vccnz L_{name}_slowT")
    a(f"L_{name}_backT:")
    a(f"v_add_f32 v{L}, v{L}, v{T[1]}")
    for x in pv(1): a(x)
    slow.append(("T", 1, None))
    a(f"v_mov_b32 v{t2}, v{L}")
    a(f"v_permlane32_swap_b32 v{L}, v{t2}")
    a(f"v_add_f32 v{L}, v{L}, v{t2}")
    a(f"v_rcp_f32 v{L}, v{L}")
    a(f"s_lshl_b32 s{s_t}, s{s_qb}, 3\ns_add_u32 s{s_t}, s{s_t}, s{s_w}\ns_lshl_b32 s{s_t}, s{s_t}, 5")
    a(f"v_add_u32 v{t2}, s{s_t}, v{t0}")
    a(f"v_lshlrev_b32 v{t2}, 11, v{t2}")
    a(f"v_lshl_add_u32 v{t2}, v{t1}, 4, v{t2}")
    a(f"s_lshl_b32 s{s_t}, s{s_h}, 6\ns_add_u32 s{s_t}, s{s_t}, {WS_O}")
    for i in range(16): a(f"v_mul_f32 v{O+i}, v{O+i}, v{L}")
    for i in range(8): a(f"v_cvt_pk_bf16_f32 v{O+i}, v{O+2*i}, v{O+2*i+1}")
    for pr in range(2):
        b = O + 4 * pr
        a(f"v_permlane32_swap_b32 v{b}, v{b+2}")
        a(f"v_permlane32_swap_b32 v{b+1}, v{b+3}")
    for pr in range(2):
        a(f"buffer_store_dwordx4 {vr(O+4*pr,4)}, v{t2}, s[{SW}:{SW+3}], s{s_t} offen offset:{pr*32}")
    a("s_waitcnt vmcnt(0)")
    a(f"L_{name}_end:")
    a("s_endpgm")
    for tag, p, u in slow:
        a(f"L_{name}_slow{tag}:")
        a("s_nop 15")
        rowmax(t3, p)
        a(f"v_max_f32 v{t3}, 0, v{t3}")
        a(f"v_sub_f32 v{t2}, 0, v{t3}")
        a(f"v_exp_f32 v{t2}, v{t2}")
        for i in range(16): a(f"v_sub_f32 v{NM+i}, v{NM+i}, v{t3}")
        for i in range(16): a(f"v_mul_f32 v{O+i}, v{O+i}, v{t2}")
        a(f"v_mul_f32 v{L}, v{L}, v{t2}")
        for i in range(16): a(f"v_sub_f32 v{S[p]+i}, v{S[p]+i}, v{t3}")
        if u is not None:
            for i in range(16): a(f"v_sub_f32 v{S[u]+i}, v{S[u]+i}, v{t3}")
        for j in range(4):
            for i in range(4 * j, 4 * j + 4): a(ex(p, i))
            a(cv(p, 2 * j)); a(cv(p, 2 * j + 1)); a(m4(p, j))
        if u is not None:
            for i in range(NEARLY): a(ex(u, i))
        a("s_nop 7")
        a(f"s_branch L_{name}_back{tag}")
    lines, n = pad_hazards(a.lines)
    print(name, "hazard pads:", n)
    return lines, V.n, 48, 32768
```

```python
from asmlib import *
from gemm import srd, f2u

ZS = 6912
YS = 8704
CONV_LDS = 8 * ZS + 4 * YS

def conv_body(a, name, V, sbase, cb, tid, wv, BAR):
    ZB = cb; YB = cb + 8 * ZS
    S = sbase
    SK = S; SV = S + 4; SQ = S + 8; SH = S + 12; SO = S + 16
    sp = S + 20
    ssk = S + 36
    sD = S + 52
    s_d0 = S + 56; s_t = S + 57; s_row = S + 58; s_u = S + 59; s_zb = S + 60
    acc = [V.alloc(16, 4) for _ in range(2)]
    NA = 4
    AF = [[V.alloc(4, 4) for _ in range(2)] for _ in range(NA)]
    ZF = [[V.alloc(4, 4) for _ in range(2)] for _ in range(2)]
    kr = V.alloc(24, 2); vv = V.alloc(18, 2)
    kf = V.alloc(12); kv = V.alloc(9); pk = V.alloc(8, 4)
    lane = V.alloc(); t0 = V.alloc(); t1 = V.alloc(); t2 = V.alloc(); t3 = V.alloc(); za = V.alloc(); ha = V.alloc(); ya = V.alloc()

    a(f"s_load_dwordx8 s[{sp}:{sp+7}], s[0:1], 0")
    a(f"s_load_dwordx4 s[{sp+8}:{sp+11}], s[0:1], 32")
    a(f"s_load_dwordx2 s[{sp+12}:{sp+13}], s[0:1], 72")
    a(f"s_and_b32 s{s_d0}, s2, 7\ns_lshl_b32 s{s_d0}, s{s_d0}, 5\ns_lshr_b32 s{s_t}, s2, 3\ns_add_u32 s{s_d0}, s{s_d0}, s{s_t}\ns_lshl_b32 s{s_d0}, s{s_d0}, 2")
    a(f"v_and_b32 v{lane}, 63, v{tid}")
    a(f"s_mov_b32 s{s_zb}, {ZB}")
    a("s_waitcnt lgkmcnt(0)")
    srd(a, SQ, sp, 4 << 20); srd(a, SK, sp + 2, 4 << 20); srd(a, SV, sp + 4, 4 << 20); srd(a, SH, sp + 8, 4 << 20); srd(a, SO, sp + 12, 8 << 20)
    a(f"s_lshl_b32 s{s_t}, s{s_d0}, 3")
    a(f"s_add_u32 s{sp+6}, s{sp+6}, s{s_t}\ns_addc_u32 s{sp+7}, s{sp+7}, 0")
    a(f"s_lshl_b32 s{s_t}, s{s_d0}, 1")
    a(f"s_add_u32 s{sp+10}, s{sp+10}, s{s_t}\ns_addc_u32 s{sp+11}, s{sp+11}, 0")
    a(f"s_load_dwordx8 s[{ssk+8}:{ssk+15}], s[{sp+6}:{sp+7}], 0")
    a(f"s_load_dwordx2 s[{sD+2}:{sD+3}], s[{sp+10}:{sp+11}], 0")
    a(f"v_lshlrev_b32 v{t0}, 14, v{tid}")
    a(f"v_add_u32 v{t0}, s{s_t}, v{t0}")
    a(f"v_subrev_u32 v{t1}, {4*2048}, v{t0}")
    for r in range(12):
        if r and r % 2 == 0: a(f"v_add_u32 v{t1}, 4096, v{t1}")
        a(f"buffer_load_dwordx2 {vr(kr+2*r,2)}, v{t1}, s[{SK}:{SK+3}], 0 offen offset:{(r%2)*2048}")
    a(f"v_subrev_u32 v{t1}, 2048, v{t0}")
    for r in range(9):
        if r and r % 2 == 0: a(f"v_add_u32 v{t1}, 4096, v{t1}")
        a(f"buffer_load_dwordx2 {vr(vv+2*r,2)}, v{t1}, s[{SV}:{SV+3}], 0 offen offset:{(r%2)*2048}")
    a(f"s_add_u32 s{s_row}, s{s_d0}, s{wv}\ns_lshl_b32 s{s_row}, s{s_row}, 12")
    a(f"v_and_b32 v{t2}, 31, v{lane}")
    a(f"v_lshrrev_b32 v{t3}, 5, v{lane}")
    a(f"v_lshlrev_b32 v{ha}, 2, v{t2}")
    a(f"v_lshl_add_u32 v{ha}, v{t3}, 4, v{ha}")
    for i in range(4): a(f"v_mov_b32 v{pk+i}, 0")
    a(f"v_and_b32 v{t0}, 31, v{tid}")
    a(f"v_lshrrev_b32 v{t1}, 3, v{t0}")
    a(f"v_add_lshl_u32 v{t0}, v{t0}, v{t1}, 4")
    a(f"v_lshrrev_b32 v{t1}, 5, v{tid}")
    a(f"v_mul_u32_u24 v{t1}, {ZS}, v{t1}")
    a(f"v_add3_u32 v{t0}, v{t0}, v{t1}, s{s_zb}")
    for i in range(4):
        a(f"ds_write_b128 v{t0}, {vr(pk,4)} offset:{(256 + 32*i)*16 + ((256+32*i)>>3)*16}")
    a(f"v_sub_u32 v{t0}, 255, v{tid}")
    a(f"v_lshrrev_b32 v{t1}, 3, v{t0}")
    a(f"v_add_lshl_u32 v{t0}, v{t0}, v{t1}, 4")
    a(f"v_add_u32 v{t0}, s{s_zb}, v{t0}")
    a(f"v_and_b32 v{t1}, 15, v{lane}")
    a(f"v_sub_u32 v{t1}, 31, v{t1}")
    a(f"v_mul_u32_u24 v{za}, 144, v{t1}")
    a(f"v_lshl_add_u32 v{za}, v{t3}, 4, v{za}")
    a(f"v_bfe_u32 v{t1}, v{lane}, 4, 1")
    a(f"v_mul_u32_u24 v{t1}, {ZS}, v{t1}")
    a(f"v_add_u32 v{za}, v{za}, v{t1}")
    a(f"s_mul_i32 s{s_u}, s{wv}, {2*ZS}")
    a(f"v_add_u32 v{za}, s{s_u}, v{za}")
    a(f"v_add_u32 v{za}, {ZB - 16*144}, v{za}")
    a(f"v_and_b32 v{t1}, 15, v{lane}")
    a(f"v_mul_u32_u24 v{ya}, 272, v{t1}")
    a(f"v_lshl_add_u32 v{ya}, v{t3}, 5, v{ya}")
    a(f"v_bfe_u32 v{t1}, v{lane}, 4, 1")
    a(f"v_lshl_add_u32 v{ya}, v{t1}, 2, v{ya}")
    a(f"s_mul_i32 s{s_u}, s{wv}, {YS}")
    a(f"v_add_u32 v{ya}, s{s_u}, v{ya}")
    a(f"v_add_u32 v{ya}, {YB}, v{ya}")
    for T in range(2):
        for i in range(16): a(f"v_mov_b32 v{acc[T]+i}, 0")
    a("s_waitcnt lgkmcnt(0)")
    for i in range(8):
        a(f"s_lshl_b32 s{ssk+2*i}, s{ssk+8+i}, 16")
        a(f"s_and_b32 s{ssk+2*i+1}, s{ssk+8+i}, 0xffff0000")
    for i in range(2):
        a(f"s_lshl_b32 s{sD+2*i}, s{sD+2+i}, 16")
        a(f"s_and_b32 s{sD+2*i+1}, s{sD+2+i}, 0xffff0000")
    def aload(k, half):
        kap = k + 64 * half
        return f"buffer_load_dwordx4 {vr(AF[k % NA][half],4)}, v{ha}, s[{SH}:{SH+3}], s{s_row} offen offset:{32*kap - 124}"
    a(f"v_mov_b32 v{t3}, 0x80000000")
    for k in range(4):
        for i in range(4):
            a(f"v_add_u32 v{t1}, {32*k + 4*i - 124}, v{ha}")
            a(f"v_cmp_gt_i32 vcc, 0, v{t1}")
            a(f"v_cndmask_b32 v{t1}, v{t1}, v{t3}, vcc")
            a(f"buffer_load_dword v{AF[k][0]+i}, v{t1}, s[{SH}:{SH+3}], s{s_row} offen")
        a(aload(k, 1))
    a("s_waitcnt vmcnt(20)")
    for c in range(4):
        dw = c >> 1
        def unp(dst, src):
            if c & 1: a(f"v_and_b32 v{dst}, 0xffff0000, v{src}")
            else: a(f"v_lshlrev_b32 v{dst}, 16, v{src}")
        for r in range(12): unp(kf + r, kr + 2 * r + dw)
        for r in range(9):
            a(f"v_mul_f32 v{kv+r}, s{ssk+4*c+3}, v{kf+r}")
            a(f"v_fmac_f32 v{kv+r}, s{ssk+4*c+2}, v{kf+r+1}")
            a(f"v_fmac_f32 v{kv+r}, s{ssk+4*c+1}, v{kf+r+2}")
            a(f"v_fmac_f32 v{kv+r}, s{ssk+4*c+0}, v{kf+r+3}")
            unp(t1, vv + 2 * r + dw)
            a(f"v_mul_f32 v{kv+r}, v{kv+r}, v{t1}")
        for i in range(4):
            a(f"v_cvt_pk_bf16_f32 v{pk+4+i}, v{kv+8-2*i}, v{kv+7-2*i}")
            a(f"v_cvt_pk_bf16_f32 v{pk+i}, v{kv+7-2*i}, v{kv+6-2*i}")
        a(f"ds_write_b128 v{t0}, {vr(pk,4)} offset:{(2*c)*ZS}")
        a(f"ds_write_b128 v{t0}, {vr(pk+4,4)} offset:{(2*c+1)*ZS}")
    a("s_waitcnt lgkmcnt(0)")
    BAR(0)
    def zoff(k): return 32 * k + 16 * (k >> 2)
    def zread(k):
        return [f"ds_read_b128 {vr(ZF[k&1][0],4)}, v{za} offset:{16*144 + zoff(k)}",
                f"ds_read_b128 {vr(ZF[k&1][1],4)}, v{za} offset:{zoff(k)}"]
    for x in zread(0): a(x)
    for k in range(64):
        nxt = zread(k + 1) if k + 1 < 64 else []
        if k < 4:
            rem = (3 - k) * 5 + 2 * k
        else:
            rem = 2 * min(NA - 1, 63 - k)
        a(f"s_waitcnt vmcnt({rem}) lgkmcnt(0)")
        for x in nxt: a(x)
        A0, A1 = AF[k % NA]
        F, G = ZF[k & 1]
        a(f"v_mfma_f32_32x32x16_bf16 {vr(acc[0],16)}, {vr(A0,4)}, {vr(F,4)}, {vr(acc[0],16)}")
        a(f"v_mfma_f32_32x32x16_bf16 {vr(acc[1],16)}, {vr(A0,4)}, {vr(G,4)}, {vr(acc[1],16)}")
        a(f"v_mfma_f32_32x32x16_bf16 {vr(acc[1],16)}, {vr(A1,4)}, {vr(F,4)}, {vr(acc[1],16)}")
        if k + NA < 64:
            a(aload(k + NA, 0)); a(aload(k + NA, 1))
        BAR(1 + k)
    qr = kr
    a(f"v_lshlrev_b32 v{t0}, 13, v{tid}")
    a(f"v_add_u32 v{t0}, s{s_t}, v{t0}")
    for g2 in range(2):
        for r in range(4):
            if r == 2: a(f"v_add_u32 v{t1}, 4096, v{t0}")
            a(f"buffer_load_dwordx2 {vr(qr+8*g2+2*r,2)}, v{t1 if r >= 2 else t0}, s[{SQ}:{SQ+3}], 0 offen offset:{(r%2)*2048}")
        if g2 == 0: a(f"v_add_u32 v{t0}, {1024*2048}, v{t0}")
    for T in range(2):
        for i in range(16):
            aa, b = i >> 2, i & 3
            a(f"ds_write_b32 v{ya}, v{acc[T]+i} offset:{(16*aa + 2*b)*4 + T*16*272}")
    a("s_waitcnt lgkmcnt(0)")
    BAR(65)
    a(f"v_lshrrev_b32 v{t1}, 4, v{tid}")
    a(f"v_add_lshl_u32 v{t1}, v{t1}, v{tid}, 4")
    a(f"v_add_u32 v{t1}, {YB}, v{t1}")
    a(f"v_sub_u32 v{t2}, 255, v{tid}")
    a(f"v_lshrrev_b32 v{t3}, 4, v{t2}")
    a(f"v_lshlrev_b32 v{t3}, 4, v{t3}")
    a(f"v_lshl_add_u32 v{t2}, v{t2}, 3, v{t3}")
    a(f"v_add_u32 v{t2}, s{s_zb}, v{t2}")
    yr = acc[0]; zr = acc[1]
    a(f"v_lshlrev_b32 v{t0}, 14, v{tid}")
    a(f"v_add_u32 v{t0}, s{s_t}, v{t0}")
    for g2 in range(2):
        for c in range(4):
            a(f"ds_read_b128 {vr(yr+4*c,4)}, v{t1} offset:{c*YS + g2*16*272}")
            a(f"ds_read_b64 {vr(zr+2*c,2)}, v{t2} offset:{(2*c+1)*ZS + (1-g2)*16*144}")
        a(f"s_waitcnt vmcnt({4*(1-g2) + (4 if g2 else 0)}) lgkmcnt(0)")
        for r in range(4):
            for c in range(4):
                e = 3 - r
                src = zr + 2 * c + (e >> 1)
                if e & 1: a(f"v_and_b32 v{kf+c}, 0xffff0000, v{src}")
                else: a(f"v_lshlrev_b32 v{kf+c}, 16, v{src}")
                a(f"v_fma_f32 v{kf+c}, v{kf+c}, s{sD+c}, v{yr+4*c+r}")
                qs = qr + 8 * g2 + 2 * r + (c >> 1)
                if c & 1: a(f"v_and_b32 v{kf+4+c}, 0xffff0000, v{qs}")
                else: a(f"v_lshlrev_b32 v{kf+4+c}, 16, v{qs}")
                a(f"v_mul_f32 v{kf+c}, v{kf+c}, v{kf+4+c}")
            a(f"v_cvt_pk_bf16_f32 v{pk+2*r}, v{kf}, v{kf+1}")
            a(f"v_cvt_pk_bf16_f32 v{pk+2*r+1}, v{kf+2}, v{kf+3}")
            a(f"buffer_store_dwordx2 {vr(pk+2*r,2)}, v{t0}, s[{SO}:{SO+3}], 0 offen")
            a(f"v_add_u32 v{t0}, {4096 if r < 3 else 1024*4096 - 3*4096}, v{t0}")

def gen_conv(name):
    a = Asm()
    V = Regs(1)
    a(f".globl {name}\n.p2align 8\n.type {name},@function\n{name}:")
    a(f"s_cmp_ge_u32 s2, 256\ns_cbranch_scc1 L_{name}_end")
    t = V.alloc()
    a(f"v_lshrrev_b32 v{t}, 6, v0")
    a(f"v_readfirstlane_b32 s3, v{t}")
    def BAR(k):
        if k in (0, 65): a("s_barrier")
    conv_body(a, name, V, 8, 0, 0, 3, BAR)
    a(f"L_{name}_end:")
    a("s_endpgm")
    lines, n = pad_hazards(a.lines)
    print(name, "hazard pads:", n)
    return lines, V.n, 96, CONV_LDS
```

```python
from asmlib import *

WS_Q = 0
WS_K = 4 << 20
WS_V = 8 << 20
WS_O = 12 << 20
QSCALE = (32 ** -0.5) * 1.4426950408889634

def f2u(x):
    import struct
    return struct.unpack("<I", struct.pack("<f", x))[0]

def srd(a, s, base_lo, nbytes, add=0):
    if add:
        a(f"s_add_u32 s{s}, s{base_lo}, {add}")
        a(f"s_addc_u32 s{s+1}, s{base_lo+1}, 0")
        a(f"s_and_b32 s{s+1}, s{s+1}, 0xffff")
    else:
        a(f"s_mov_b32 s{s}, s{base_lo}")
        a(f"s_and_b32 s{s+1}, s{base_lo+1}, 0xffff")
    a(f"s_mov_b32 s{s+2}, {nbytes}")
    a(f"s_mov_b32 s{s+3}, 0x20000")

def gen_gemm(name, mode):
    a = Asm()
    nseg = 3 if mode == "qkv" else 1
    ldw = 6144 if mode == "qkv" else 2048
    segstride = 2048
    XB = 16384; WB = 8192 * nseg; SB = XB + WB
    NB = 3 if mode == "qkv" else 6
    NST = 16
    nx = 4; nw = 2 * nseg; D = nx + nw
    per_reg = 65536 // SB
    nreg = (NB + per_reg - 1) // per_reg

    V = Regs(1)
    acc = [[V.alloc(16, 4) for t in range(nseg)] for mb in range(2)]
    xf = [[V.alloc(4, 4) for mb in range(2)] for s in range(2)]
    wf = [[V.alloc(4, 4) for t in range(nseg)] for s in range(2)]
    xa = [[V.alloc() for kk in range(4)] for r in range(nreg)]
    wa = [V.alloc() for r in range(nreg)]
    gx = [V.alloc() for q in range(nx)]
    gw = [V.alloc() for q in range(nw)]
    t0 = V.alloc(); t1 = V.alloc(); t2 = V.alloc(); t3 = V.alloc(); lane = V.alloc()
    tmp = V.alloc(8, 4)
    SX = 8; SW = 12; SO = 16
    s_w = 20; s_mt = 21; s_j = 22; s_kx = 23; s_kw = 24; s_t = 25; s_ldsw = 26; s_wm = 27; s_wn = 28; s_c = 29

    a(f".globl {name}\n.p2align 8\n.type {name},@function\n{name}:")
    a(f"s_cmp_ge_u32 s2, 256\ns_cbranch_scc1 L_{name}_end")
    if mode == "qkv":
        a("s_load_dwordx4 s[4:7], s[0:1], 48")
        a("s_load_dwordx2 s[30:31], s[0:1], 88")
    else:
        a("s_load_dwordx2 s[4:5], s[0:1], 88")
        a("s_load_dwordx2 s[6:7], s[0:1], 64")
        a("s_load_dwordx2 s[30:31], s[0:1], 72")
    a(f"v_lshrrev_b32 v{t0}, 6, v0")
    a(f"v_and_b32 v{lane}, 63, v0")
    a(f"v_readfirstlane_b32 s{s_w}, v{t0}")
    a(f"s_and_b32 s{s_mt}, s2, 1\ns_lshl_b32 s{s_mt}, s{s_mt}, 3\ns_bfe_u32 s{s_t}, s2, 0x30003\ns_add_u32 s{s_mt}, s{s_mt}, s{s_t}")
    a(f"s_bfe_u32 s{s_j}, s2, 0x20001\ns_lshl_b32 s{s_j}, s{s_j}, 2\ns_lshr_b32 s{s_t}, s2, 6\ns_add_u32 s{s_j}, s{s_j}, s{s_t}")
    a(f"s_and_b32 s{s_wm}, s{s_w}, 1\ns_lshr_b32 s{s_wn}, s{s_w}, 1")
    a("s_waitcnt lgkmcnt(0)")
    if mode == "qkv":
        srd(a, SX, 4, 4 << 20); srd(a, SW, 6, 6 << 20); srd(a, SO, 30, 12 << 20)
    else:
        srd(a, SX, 4, 4 << 20, WS_O); srd(a, SW, 6, 2 << 20); srd(a, SO, 30, 8 << 20)
    a(f"v_lshrrev_b32 v{t0}, 3, v{lane}")
    a(f"v_lshrrev_b32 v{t1}, 4, v{lane}")
    a(f"v_and_b32 v{t2}, 7, v{lane}")
    a(f"v_xor_b32 v{t2}, v{t2}, v{t1}")
    a(f"s_lshl_b32 s{s_t}, s{s_mt}, 7\ns_lshl_b32 s{s_c}, s{s_w}, 5\ns_add_u32 s{s_t}, s{s_t}, s{s_c}")
    a(f"v_add_u32 v{t0}, s{s_t}, v{t0}")
    a(f"v_lshlrev_b32 v{t0}, 11, v{t0}")
    for qq in range(nx):
        if qq & 1: a(f"v_xor_b32 v{t3}, 4, v{t2}")
        else: a(f"v_mov_b32 v{t3}, v{t2}")
        a(f"v_lshl_add_u32 v{gx[qq]}, v{t3}, 4, v{t0}")
        if qq: a(f"v_add_u32 v{gx[qq]}, {qq*8*2048}, v{gx[qq]}")
    a(f"v_lshrrev_b32 v{t0}, 3, v{lane}")
    a(f"s_lshl_b32 s{s_t}, s{s_w}, 4")
    a(f"v_add_u32 v{t0}, s{s_t}, v{t0}")
    a(f"s_mov_b32 s{s_c}, {ldw}")
    a(f"v_mul_lo_u32 v{t0}, v{t0}, s{s_c}")
    a(f"v_and_b32 v{t1}, 1, v{t1}")
    a(f"v_lshlrev_b32 v{t1}, 2, v{t1}")
    a(f"v_and_b32 v{t2}, 7, v{lane}")
    a(f"v_xor_b32 v{t2}, v{t2}, v{t1}")
    a(f"v_lshl_add_u32 v{t0}, v{t2}, 4, v{t0}")
    a(f"s_lshl_b32 s{s_t}, s{s_j}, 7")
    a(f"v_add_u32 v{t0}, s{s_t}, v{t0}")
    for sg in range(nseg):
        for qh in range(2):
            a(f"v_add_u32 v{gw[sg*2+qh]}, {sg*segstride + qh*8*ldw}, v{t0}")
    a(f"v_and_b32 v{t0}, 31, v{lane}")
    a(f"v_lshrrev_b32 v{t1}, 5, v{lane}")
    a(f"v_bfe_u32 v{t2}, v{lane}, 1, 3")
    a(f"v_xor_b32 v{t2}, v{t2}, v{t1}")
    a(f"s_lshl_b32 s{s_t}, s{s_wm}, 6")
    a(f"v_add_u32 v{t0}, s{s_t}, v{t0}")
    a(f"v_lshlrev_b32 v{t0}, 7, v{t0}")
    for kk in range(4):
        a(f"v_xor_b32 v{t3}, {2*kk}, v{t2}")
        a(f"v_lshl_add_u32 v{xa[0][kk]}, v{t3}, 4, v{t0}")
        for r in range(1, nreg):
            a(f"v_add_u32 v{xa[r][kk]}, {r*per_reg*SB}, v{xa[0][kk]}")
    a(f"v_lshrrev_b32 v{t0}, 5, v{lane}")
    a(f"v_lshlrev_b32 v{t0}, 3, v{t0}")
    a(f"v_bfe_u32 v{t1}, v{lane}, 2, 2")
    a(f"v_add_u32 v{t0}, v{t0}, v{t1}")
    a(f"v_lshlrev_b32 v{t0}, 7, v{t0}")
    a(f"v_lshrrev_b32 v{t1}, 1, v{t1}")
    a(f"v_xor_b32 v{t1}, s{s_wn}, v{t1}")
    a(f"v_lshl_add_u32 v{t0}, v{t1}, 6, v{t0}")
    a(f"v_bfe_u32 v{t1}, v{lane}, 4, 1")
    a(f"v_lshl_add_u32 v{t0}, v{t1}, 5, v{t0}")
    a(f"v_and_b32 v{t1}, 3, v{lane}")
    a(f"v_lshl_add_u32 v{t0}, v{t1}, 3, v{t0}")
    a(f"v_add_u32 v{wa[0]}, {XB}, v{t0}")
    for r in range(1, nreg):
        a(f"v_add_u32 v{wa[r]}, {r*per_reg*SB}, v{wa[0]}")
    for mb in range(2):
        for t in range(nseg):
            for i in range(16): a(f"v_mov_b32 v{acc[mb][t]+i}, 0")
    a(f"s_lshl_b32 s{s_ldsw}, s{s_w}, 12")
    a(f"s_lshl_b32 s{s_c}, s{s_w}, 11")
    a(f"s_mov_b32 s{s_kx}, 0\ns_mov_b32 s{s_kw}, 0")

    def dma_list(st):
        b = (st % NB) * SB
        L = []
        for qq in range(nx):
            L.append((f"s_add_u32 m0, s{s_ldsw}, {b + qq*1024}", f"buffer_load_dwordx4 v{gx[qq]}, s[{SX}:{SX+3}], s{s_kx} offen lds"))
        for sg in range(nseg):
            for qh in range(2):
                L.append((f"s_add_u32 m0, s{s_c}, {b + XB + sg*8192 + qh*1024}", f"buffer_load_dwordx4 v{gw[sg*2+qh]}, s[{SW}:{SW+3}], s{s_kw} offen lds"))
        return L
    def adv():
        return [f"s_add_u32 s{s_kx}, s{s_kx}, 128", f"s_add_u32 s{s_kw}, s{s_kw}, {64*ldw}"]
    def reads(st, kk, fs):
        b = st % NB; r = b // per_reg; off = (b % per_reg) * SB
        L = []
        for mb in range(2):
            L.append(f"ds_read_b128 {vr(xf[fs][mb],4)}, v{xa[r][kk]} offset:{off + mb*4096}")
        for t in range(nseg):
            for p in range(2):
                L.append(f"ds_read_b64_tr_b16 {vr(wf[fs][t]+2*p,2)}, v{wa[r]} offset:{off + t*8192 + (16*kk+4*p)*128}")
        return L
    def mfmas(fs):
        L = []
        for t in range(nseg):
            for mb in range(2):
                A, B = (wf[fs][t], xf[fs][mb])
                if mode == "qkv" and t == 2: A, B = B, A
                L.append(f"v_mfma_f32_32x32x16_bf16 {vr(acc[mb][t],16)}, {vr(A,4)}, {vr(B,4)}, {vr(acc[mb][t],16)}")
        return L

    for st in range(NB):
        for m, l in dma_list(st):
            a(m); a("s_nop 0"); a(l)
        for x in adv(): a(x)
    a(f"s_waitcnt vmcnt({(NB-1)*D})")
    a("s_barrier")
    for x in reads(0, 0, 0): a(x)
    pend = []
    fs = 0
    for st in range(NST):
        for kk in range(4):
            a("s_waitcnt lgkmcnt(0)")
            rd = []
            if kk < 3:
                rd = reads(st, kk + 1, fs ^ 1)
            elif st + 1 < NST:
                assert not pend
                later = min(st + NB - 1, NST - 1) - (st + 1)
                a(f"s_waitcnt vmcnt({later*D})")
                a("s_barrier")
                rd = reads(st + 1, 0, fs ^ 1)
                if st + NB < NST:
                    for m, l in dma_list(st + NB): pend += [m, l]
                    pend += adv()
            mf = mfmas(fs)
            quota = {3: 3, 0: 3, 1: 3, 2: 99}[kk] if nseg == 3 else {3: 2, 0: 2, 1: 2, 2: 99}[kk]
            done = 0
            for i, m in enumerate(mf):
                a(m)
                for _ in range(2 if nseg == 3 else 2):
                    if rd: a(rd.pop(0))
                if not rd and pend and done < quota:
                    a(pend.pop(0))
                    if pend and pend[0].startswith("buffer"):
                        a(pend.pop(0)); done += 1
            while rd: a(rd.pop(0))
            while pend and done < quota:
                x = pend.pop(0); a(x)
                if x.startswith("buffer"): done += 1
            if kk == 2:
                while pend: a(pend.pop(0))
            fs ^= 1
    a("s_nop 15")
    if mode == "qkv":
        a(f"s_lshl_b32 s{s_t}, s{s_j}, 1\ns_add_u32 s{s_t}, s{s_t}, s{s_wn}\ns_lshl_b32 s{s_t}, s{s_t}, 17")
        a(f"s_lshl_b32 s{s_c}, s{s_mt}, 1\ns_add_u32 s{s_c}, s{s_c}, s{s_wm}\ns_lshl_b32 s{s_c}, s{s_c}, 12\ns_add_u32 s{s_t}, s{s_t}, s{s_c}")
        a(f"v_and_b32 v{t0}, 31, v{lane}")
        a(f"v_lshrrev_b32 v{t1}, 5, v{lane}")
        a(f"v_lshlrev_b32 v{t1}, 4, v{t1}")
        a(f"v_lshl_add_u32 v{t2}, v{t0}, 6, v{t1}")
        a(f"v_add_u32 v{t2}, s{s_t}, v{t2}")
        a(f"v_lshl_add_u32 v{t3}, v{t0}, 7, v{t1}")
        a(f"v_add_u32 v{t3}, s{s_t}, v{t3}")
        a(f"v_add_u32 v{t3}, {WS_V}, v{t3}")
        a(f"v_add_u32 v{t0}, {WS_K}, v{t2}")
        a(f"s_mov_b32 s{s_c}, {f2u(QSCALE)}")
    else:
        a(f"s_lshl_b32 s{s_t}, s{s_mt}, 1\ns_add_u32 s{s_t}, s{s_t}, s{s_wm}\ns_lshl_b32 s{s_t}, s{s_t}, 18")
        a(f"s_lshl_b32 s{s_c}, s{s_j}, 1\ns_add_u32 s{s_c}, s{s_c}, s{s_wn}\ns_lshl_b32 s{s_c}, s{s_c}, 6\ns_add_u32 s{s_t}, s{s_t}, s{s_c}\ns_add_u32 s{s_t}, s{s_t}, 2048")
        a(f"v_and_b32 v{t0}, 31, v{lane}")
        a(f"v_lshrrev_b32 v{t1}, 5, v{lane}")
        a(f"v_lshlrev_b32 v{t1}, 4, v{t1}")
        a(f"v_lshl_add_u32 v{t2}, v{t0}, 12, v{t1}")
        a(f"v_add_u32 v{t2}, s{s_t}, v{t2}")
        a(f"v_add_u32 v{t3}, {32*4096}, v{t2}")
    for mb in range(2):
        for t in range(nseg):
            A = acc[mb][t]
            if mode == "qkv" and t == 0:
                for i in range(16): a(f"v_mul_f32 v{A+i}, s{s_c}, v{A+i}")
            for i in range(8):
                a(f"v_cvt_pk_bf16_f32 v{A+i}, v{A+2*i}, v{A+2*i+1}")
            for pr in range(2):
                b = A + 4 * pr
                a(f"v_permlane32_swap_b32 v{b}, v{b+2}")
                a(f"v_permlane32_swap_b32 v{b+1}, v{b+3}")
            for pr in range(2):
                b = A + 4 * pr
                if mode == "qkv":
                    if t < 2:
                        a(f"buffer_store_dwordx4 {vr(b,4)}, v{t2 if t == 0 else t0}, s[{SO}:{SO+3}], 0 offen offset:{mb*2048 + pr*32}")
                    else:
                        a(f"buffer_store_dwordx4 {vr(b,4)}, v{t3}, s[{SO}:{SO+3}], 0 offen offset:{mb*64 + pr*32}")
                else:
                    a(f"buffer_store_dwordx4 {vr(b,4)}, v{t2 if mb == 0 else t3}, s[{SO}:{SO+3}], 0 offen offset:{pr*32}")
    a(f"L_{name}_end:")
    a("s_endpgm")
    lines, n = pad_hazards(a.lines)
    return lines, V.n, 48, NB * SB
```

```python
import sys
from asmlib import *
from gemm import gen_gemm
from attn import gen_attn
from conv import gen_conv

HDR = open("concat_heads__ssm_conv_h3__softmax_full_mha__prompt.s.ref").read().split("; Override launch geometry")[0]

def build(path):
    ks = [("qkv_kernel", gen_gemm("qkv_kernel", "qkv"), 256),
          ("attn_kernel", gen_attn("attn_kernel"), 512),
          ("outp_kernel", gen_gemm("outp_kernel", "out"), 256),
          ("conv_kernel", gen_conv("conv_kernel"), 256)]
    out = HDR
    for n, (lines, nv, ns, lds), blk in ks:
        out += f"; @launch kernel={n} grid=(256,1,1) block=({blk},1,1) lds={lds}\n"
    out += '.amdgcn_target "amdgcn-amd-amdhsa--gfx950"\n.text\n'
    for n, (lines, nv, ns, lds), blk in ks:
        out += "\n".join(lines) + "\n"
        print(n, "vgprs", nv, "lds", lds, "lines", len(lines))
    out += '.section .rodata,"a"\n'
    for n, (lines, nv, ns, lds), blk in ks:
        out += kernel_desc(n, nv, ns)
    open(path, "w").write(out)

if __name__ == "__main__":
    build(sys.argv[1] if len(sys.argv) > 1 else "concat_heads__ssm_conv_h3__softmax_full_mha__prompt.s")
```

```python
import re

TRANS = ("v_exp_f32", "v_log_f32", "v_rcp_f32", "v_rsq_f32", "v_sqrt_f32", "v_sin_f32", "v_cos_f32", "v_exp_f16", "v_rcp_iflag_f32")

def parse_regs(tok):
    tok = tok.strip()
    tok = tok.lstrip("-")
    m = re.match(r"^abs\((.*)\)$", tok)
    if m: tok = m.group(1)
    m = re.match(r"^\|(.*)\|$", tok)
    if m: tok = m.group(1)
    m = re.match(r"^([vas])\[(\d+):(\d+)\]$", tok)
    if m:
        return [(m.group(1), i) for i in range(int(m.group(2)), int(m.group(3)) + 1)]
    m = re.match(r"^([vas])(\d+)$", tok)
    if m:
        return [(m.group(1), int(m.group(2)))]
    if tok == "vcc": return [("s", 106), ("s", 107)]
    if tok == "exec": return [("s", 126), ("s", 127)]
    if tok == "m0": return [("s", 124)]
    return []

class Ins:
    def __init__(self, text):
        self.text = text
        t = text.split(";")[0].strip()
        self.is_label = t.endswith(":")
        self.label = t[:-1] if self.is_label else None
        self.op = "" if self.is_label else t.split()[0] if t else ""
        self.reads = set(); self.writes = set()
        self.kind = None; self.passes = 0
        self.srcC = set(); self.srcAB = set()
        self.target = None
        self.ws = 1
        if self.is_label or not t or t.startswith("."):
            self.ws = 0; self.kind = "none"; return
        rest = t[len(self.op):].strip()
        ops = []
        depth = 0; cur = ""
        for ch in rest:
            if ch in "[(": depth += 1
            if ch in "])": depth -= 1
            if ch == "," and depth == 0:
                ops.append(cur.strip()); cur = ""
            else: cur += ch
        if cur.strip(): ops.append(cur.strip())
        mods = []
        if ops:
            parts = ops[-1].split()
            ops[-1] = parts[0] if parts else ""
            mods = parts[1:]
        self.ops = ops; self.mods = mods
        op = self.op
        R = lambda i: set(parse_regs(ops[i])) if i < len(ops) else set()
        if op == "s_nop":
            self.kind = "nop"; self.ws = int(ops[0], 0) + 1
        elif op.startswith("v_mfma"):
            self.kind = "mfma"
            self.writes = R(0); self.srcAB = R(1) | R(2); self.srcC = R(3)
            self.reads = self.srcAB | self.srcC
            if "32x32x16" in op: self.passes = 8
            elif "16x16x32" in op: self.passes = 4
            elif "4x4x4" in op: self.passes = 2
            else: raise Exception("unknown mfma " + op)
        elif op.startswith("v_cmp"):
            self.kind = "valu"
            self.writes = R(0); self.reads = R(1) | R(2)
            if op.startswith("v_cmpx"): self.writes |= {("s",126),("s",127)}
        elif op.startswith("v_permlane") and "swap" in op:
            self.kind = "valu"; self.sub = "permlane"
            self.writes = R(0) | R(1); self.reads = R(0) | R(1)
        elif op in ("v_readfirstlane_b32", "v_readlane_b32"):
            self.kind = "valu"; self.writes = R(0); self.reads = set().union(*[R(i) for i in range(1, len(ops))])
        elif op.startswith("v_"):
            self.kind = "valu"
            self.writes = R(0)
            st = 1
            if op.startswith(("v_add_co", "v_sub_co", "v_addc_co", "v_subb_co", "v_div_scale", "v_mad_u64_u32")):
                self.writes |= R(1); st = 2
            self.reads = set().union(*[R(i) for i in range(st, len(ops))]) if len(ops) > st else set()
            if op.startswith(("v_fmac", "v_dot2c", "v_writelane")) or "UNUSED_PRESERVE" in t: self.reads |= R(0)
            if op.startswith("v_cndmask") and len(ops) == 3: self.reads |= set(parse_regs("vcc"))
        elif op.startswith("ds_read") or op.startswith("ds_bpermute") or op.startswith("ds_permute") or op.startswith("ds_swizzle"):
            self.kind = "ds"; self.writes = R(0); self.reads = set().union(*[R(i) for i in range(1, len(ops))])
        elif op.startswith("ds_write"):
            self.kind = "ds"; self.reads = set().union(*[R(i) for i in range(len(ops))])
        elif op.startswith("buffer_load") or op.startswith("global_load"):
            self.kind = "vmem"
            if "lds" in mods or "_lds_" in op:
                self.reads = set().union(*[R(i) for i in range(len(ops))]) | {("s", 124)}
                self.sub = "ldsdma"
            else:
                self.writes = R(0); self.reads = set().union(*[R(i) for i in range(1, len(ops))])
        elif op.startswith("buffer_store") or op.startswith("global_store") or op.startswith("buffer_atomic") or op.startswith("global_atomic"):
            self.kind = "vmem"; self.reads = set().union(*[R(i) for i in range(len(ops))])
            self.sub = "store"
            self.store_data = R(0) if op.startswith("buffer") else R(1)
            self.wide = op.endswith("x4") or op.endswith("x3")
        elif op.startswith("s_cbranch") or op == "s_branch":
            self.kind = "branch"; self.target = ops[0]
            if "vcc" in op: self.reads = set(parse_regs("vcc"))
            if "exec" in op: self.reads = set(parse_regs("exec"))
        elif op in ("s_endpgm",):
            self.kind = "end"
        elif op.startswith("s_load") or op.startswith("s_memtime") or op.startswith("s_memrealtime") or op.startswith("s_buffer_load"):
            self.kind = "smem"; self.writes = R(0); self.reads = set().union(*[R(i) for i in range(1, len(ops))]) if len(ops) > 1 else set()
        elif op.startswith("s_cmp") or op in ("s_waitcnt", "s_barrier", "s_setprio", "s_sleep"):
            self.kind = "salu"; self.reads = set().union(*[R(i) for i in range(len(ops))]) if ops else set()
        elif op.startswith("s_"):
            self.kind = "salu"; self.writes = R(0); self.reads = set().union(*[R(i) for i in range(1, len(ops))]) if len(ops) > 1 else set()
            if "saveexec" in op: self.writes |= set(parse_regs("exec")); self.reads |= set(parse_regs("exec"))
        else:
            raise Exception("cannot parse: " + text)
        self.sub = getattr(self, "sub", None)

def vec(regs): return {r for r in regs if r[0] in "va"}
def sca(regs): return {r for r in regs if r[0] == "s"}

D_VALU = {2: 5, 4: 8, 8: 12}
D_AB = {2: 5, 4: 8, 8: 12}
D_CPART = {2: 4, 4: 6, 8: 10}
WAR_C = {2: 1, 4: 3, 8: 7}

def need(p, c):
    n = 0
    if p.kind == "mfma":
        D = p.writes
        if c.kind == "mfma":
            if D & c.srcAB: n = max(n, D_AB[p.passes])
            if D & c.srcC:
                if D == c.srcC and p.passes == c.passes: n = max(n, 2 if p.passes == 2 else 0)
                else: n = max(n, D_CPART[p.passes])
            elif D & c.writes:
                n = max(n, D_CPART[p.passes])
        elif c.kind in ("valu", "vmem", "ds"):
            if D & (c.reads | c.writes): n = max(n, D_VALU[p.passes])
        if c.kind == "valu" and (p.srcC & c.writes): n = max(n, WAR_C[p.passes])
        if c.kind in ("ds", "vmem") and (p.srcC & c.writes): n = max(n, WAR_C[p.passes])
    if p.kind == "valu":
        if c.kind == "mfma" and (vec(p.writes) & c.reads): n = max(n, 2)
        if c.kind == "mfma" and (("s",126) in p.writes): n = max(n, 4)
        if p.op in TRANS and c.kind == "valu" and c.op not in TRANS and (p.writes & (c.reads)): n = max(n, 1)
        if p.op in TRANS and c.kind in ("mfma",) and (p.writes & c.reads): n = max(n, 2)
        if c.kind == "valu" and c.sub == "permlane" and (vec(p.writes) & c.reads): n = max(n, 2)
        if c.op in ("v_readfirstlane_b32", "v_readlane_b32") and (vec(p.writes) & c.reads): n = max(n, 1)
        if sca(p.writes):
            if c.kind == "vmem" and (sca(p.writes) & c.reads): n = max(n, 5)
            if c.kind == "valu" and (sca(p.writes) & c.reads): n = max(n, 2)
            if c.op in ("v_readlane_b32", "v_writelane_b32") and (sca(p.writes) & c.reads): n = max(n, 4)
            if c.kind in ("salu", "branch") and (sca(p.writes) & c.reads): n = max(n, 1)
        if "dpp" in c.text and c.kind == "valu" and (vec(p.writes) & c.reads): n = max(n, 2)
        if ("sdwa" in p.op or "op_sel" in p.text) and c.kind == "valu" and (p.writes & (c.reads | c.writes)): n = max(n, 1)
    if p.kind == "salu":
        if ("s", 124) in p.writes and c.sub == "ldsdma": n = max(n, 1)
    if p.kind == "vmem" and p.sub == "store" and p.wide:
        if p.store_data & c.writes:
            n = max(n, 2 if c.kind in ("valu", "mfma") else 1)
    return n

class Asm:
    def __init__(self):
        self.lines = []
    def __call__(self, text):
        for l in text.split("\n"):
            l = l.strip()
            if l: self.lines.append(l)
    def label(self, n): self.lines.append(n + ":")
    def c(self, t): self.lines.append("; " + t)
    def text(self): return "\n".join(self.lines) + "\n"

def pad_hazards(lines, verbose=False, maxlook=14):
    total = 0
    while True:
        ins = [Ins(l) if not l.startswith(";") else Ins("") for l in lines]
        n = len(ins)
        labels = {x.label: i for i, x in enumerate(ins) if x.is_label}
        preds = [[] for _ in range(n)]
        for i, x in enumerate(ins):
            if i + 1 < n and not (x.op == "s_branch" or x.kind == "end"):
                preds[i + 1].append(i)
            if x.kind == "branch":
                preds[labels[x.target]].append(i)
        fixes = []
        last_fix = -100
        for i, c in enumerate(ins):
            if c.kind in ("none", "nop"): continue
            if i - last_fix < 2 * maxlook + 8: continue
            stack = [(p, 0) for p in preds[i]]
            seen = {}
            worst = 0
            while stack:
                j, d = stack.pop()
                if j in seen and seen[j] <= d: continue
                seen[j] = d
                p = ins[j]
                if p.kind not in ("none", "nop"):
                    nd = need(p, c)
                    if nd > d: worst = max(worst, nd - d)
                d2 = d + p.ws
                if d2 < maxlook:
                    for q in preds[j]: stack.append((q, d2))
            if worst > 0:
                fixes.append((i, worst)); last_fix = i
        if not fixes: break
        for i, w in reversed(fixes):
            if verbose: print("pad %d before: %s" % (w, lines[i]))
            total += w
            add = []
            while w > 0:
                k = min(w, 16); add.append("s_nop %d" % (k - 1)); w -= k
            lines = lines[:i] + add + lines[i:]
    return lines, total

class Regs:
    def __init__(self, start=0, prefix="v"):
        self.n = start; self.prefix = prefix; self.names = {}
    def alloc(self, count=1, align=1, name=None):
        self.n = (self.n + align - 1) // align * align
        r = self.n; self.n += count
        if name: self.names[name] = r
        return r

def vr(base, cnt=1, p="v"):
    return f"{p}{base}" if cnt == 1 else f"{p}[{base}:{base+cnt-1}]"
def sr(base, cnt=1): return vr(base, cnt, "s")
def ar(base, cnt=1): return vr(base, cnt, "a")

def kernel_desc(name, vgpr, sgpr, accum=None):
    if accum is None: accum = (vgpr + 3) // 4 * 4
    return f""".p2align 6
.amdhsa_kernel {name}
  .amdhsa_next_free_vgpr {vgpr}
  .amdhsa_next_free_sgpr {sgpr}
  .amdhsa_accum_offset {accum}
  .amdhsa_group_segment_fixed_size 0
  .amdhsa_kernarg_size 96
  .amdhsa_user_sgpr_count 2
  .amdhsa_user_sgpr_kernarg_segment_ptr 1
  .amdhsa_system_sgpr_workgroup_id_x 1
.end_amdhsa_kernel
"""


STAMPS = False
class Stamper:
    def __init__(self, a, base=70):
        self.a = a; self.base = base; self.n = 0
    def stamp(self, real=False):
        if not globals()["STAMPS"]: return
        r = self.base + 2 * self.n; self.n += 1
        self.a(f"{'s_memrealtime' if real else 's_memtime'} s[{r}:{r+1}]")
        self.a("s_waitcnt lgkmcnt(0)")
    def dump(self, nm, wg=0, slot_sgpr=None):
        if not globals()["STAMPS"]: return
        a = self.a
        a(f"s_cmp_lg_u32 s2, {wg}")
        a(f"s_cbranch_scc1 L_{nm}_nodump")
        a(f"s_load_dwordx2 s[{self.base+30}:{self.base+31}], s[0:1], 80")
        a("v_lshrrev_b32 v1, 6, v0")
        a("v_and_b32 v2, 63, v0")
        a("v_cmp_eq_u32 vcc, 0, v2")
        a("v_cmp_gt_u32 s[98:99], 5, v1")
        a("s_and_b64 vcc, vcc, s[98:99]")
        a("v_mul_u32_u24 v1, 48, v1")
        a("s_waitcnt lgkmcnt(0)")
        a("s_and_saveexec_b64 s[98:99], vcc")
        a(f"s_cbranch_execz L_{nm}_nodump")
        for i in range(self.n):
            a(f"v_mov_b32 v2, s{self.base+2*i}")
            a(f"global_store_dword v1, v2, s[{self.base+30}:{self.base+31}] offset:{4*i}")
        a("s_waitcnt vmcnt(0)")
        a(f"L_{nm}_nodump:")


class Stamper2:
    def __init__(self, a, vreg, launch):
        self.a = a; self.v = vreg; self.launch = launch
        if globals()["STAMPS"]:
            a("s_mov_b32 s95, 0"); a(f"v_mov_b32 v{vreg}, 0")
    def stamp(self):
        if not globals()["STAMPS"]: return
        a = self.a
        a("s_memtime s[96:97]"); a("s_waitcnt lgkmcnt(0)")
        a("s_mov_b32 m0, s95"); a("s_nop 0"); a(f"v_writelane_b32 v{self.v}, s96, m0"); a("s_add_u32 s95, s95, 1")
    def dump(self, nm, wg=37):
        if not globals()["STAMPS"]: return
        a = self.a
        a(f"s_cmp_lg_u32 s2, {wg}"); a(f"s_cbranch_scc1 L_{nm}_nodump2")
        a("s_load_dwordx2 s[96:97], s[0:1], 88"); a("s_waitcnt lgkmcnt(0)")
        a(f"s_add_u32 s96, s96, {(48 << 20) + self.launch * 65536}"); a("s_addc_u32 s97, s97, 0")
        a("v_lshlrev_b32 v1, 2, v0")
        a(f"global_store_dword v1, v{self.v}, s[96:97]"); a("s_waitcnt vmcnt(0)")
        a(f"L_{nm}_nodump2:")
```

```python
from asmlib import *
import asmlib
from gemm import WS_Q, WS_K, WS_V, WS_O, f2u
from helpers import srd
from conv3 import conv_body, CONV_LDS

ABUF = 16384
NAB = 4
ATT_LDS = ABUF * NAB
LTHR = 2.0 ** 20

def gen_attn(name, opt=None):
    opt = opt or {}
    with_conv = opt.get("conv", True)
    a = Asm()
    V = Regs(1)
    S = [V.alloc(16, 4) for _ in range(2)]
    O = [V.alloc(16, 4) for _ in range(2)]
    NM = [V.alloc(16, 4) for _ in range(2)]
    P = [V.alloc(8, 4) for _ in range(2)]
    Q = [[V.alloc(4, 4) for kk in range(2)] for _ in range(2)]
    KF = [[V.alloc(4, 4) for kk in range(2)] for b in range(2)]
    VF = [[V.alloc(4, 4) for j in range(2)] for b in range(2)]
    T = [V.alloc(4, 4) for _ in range(2)]
    ONE = V.alloc(4, 4)
    E = V.alloc(8, 2)
    L = T
    ka = [V.alloc() for kk in range(2)]
    va = [V.alloc() for ks in range(2)]
    gd = V.alloc(); kg = V.alloc(); vg = V.alloc()
    lane = V.alloc(); t0 = V.alloc(); t1 = V.alloc(); t2 = V.alloc(); t3 = V.alloc(); t4 = V.alloc(); t5 = V.alloc()
    SW = 8
    s_w = 12; s_h = 13; s_qb = 14; s_t = 15; s_c = 16; s_so = 17; s_lds = 18; s_it = 19; s_thr = 20; s_hb = 21; s_ret = 22; s_sv = 23

    a(f".globl {name}\n.p2align 8\n.type {name},@function\n{name}:")
    a(f"s_cmp_ge_u32 s2, 256\ns_cbranch_scc1 L_{name}_end")
    st2 = Stamper2(a, 250, opt.get("launch", 1)); st2.stamp()
    a(f"v_lshrrev_b32 v{t0}, 6, v0")
    a(f"v_readfirstlane_b32 s{s_w}, v{t0}")
    if with_conv:
        a(f"s_cmp_ge_u32 s{s_w}, 4\ns_cbranch_scc1 L_{name}_conv")
    a("s_load_dwordx2 s[4:5], s[0:1], 88")
    a(f"v_and_b32 v{lane}, 63, v0")
    a(f"s_and_b32 s{s_h}, s2, 7\ns_lshl_b32 s{s_h}, s{s_h}, 2\ns_lshr_b32 s{s_t}, s2, 6\ns_add_u32 s{s_h}, s{s_h}, s{s_t}")
    a(f"s_bfe_u32 s{s_qb}, s2, 0x30003")
    a(f"s_lshl_b32 s{s_hb}, s{s_h}, 17")
    a(f"s_mov_b32 s{s_thr}, {f2u(LTHR)}")
    a(f"v_and_b32 v{t0}, 31, v{lane}")
    a(f"v_lshrrev_b32 v{t1}, 5, v{lane}")
    a(f"v_and_b32 v{t2}, 19, v{lane}")
    a(f"v_and_b32 v{t3}, 4, v{lane}")
    a(f"v_lshl_or_b32 v{t2}, v{t3}, 1, v{t2}")
    a(f"v_and_b32 v{t3}, 8, v{lane}")
    a(f"v_lshrrev_b32 v{t3}, 1, v{t3}")
    a(f"v_or_b32 v{t2}, v{t2}, v{t3}")
    a(f"v_lshlrev_b32 v{kg}, 6, v{t2}")
    a(f"v_bfe_u32 v{t3}, v{t2}, 2, 2")
    a(f"v_xor_b32 v{t3}, v{t3}, v{t1}")
    a(f"v_lshl_add_u32 v{ka[0]}, v{t3}, 4, v{kg}")
    a(f"v_xor_b32 v{ka[1]}, 32, v{ka[0]}")
    a(f"v_lshl_add_u32 v{kg}, v{t1}, 4, v{kg}")
    a(f"v_add_u32 v{kg}, {WS_K}, v{kg}")
    a(f"v_lshlrev_b32 v{vg}, 6, v{t0}")
    a(f"v_bfe_u32 v{t3}, v{lane}, 2, 2")
    a(f"v_xor_b32 v{t3}, v{t3}, v{t1}")
    a(f"v_lshl_add_u32 v{va[0]}, v{t3}, 4, v{vg}")
    a(f"v_add_u32 v{va[0]}, 8192, v{va[0]}")
    a(f"v_xor_b32 v{va[1]}, 32, v{va[0]}")
    a(f"v_lshl_add_u32 v{vg}, v{t1}, 4, v{vg}")
    a(f"v_add_u32 v{vg}, {WS_V}, v{vg}")
    a(f"s_lshl_b32 s{s_t}, s{s_qb}, 2\ns_add_u32 s{s_t}, s{s_t}, s{s_w}\ns_lshl_b32 s{s_t}, s{s_t}, 6")
    a(f"v_add_u32 v{t2}, s{s_t}, v{t0}")
    a(f"v_lshlrev_b32 v{t2}, 6, v{t2}")
    a(f"v_lshl_add_u32 v{t2}, v{t1}, 4, v{t2}")
    a("s_waitcnt lgkmcnt(0)")
    srd(a, SW, 4, 16 << 20)
    for t in range(2):
        for kk in range(2):
            a(f"buffer_load_dwordx4 {vr(Q[t][kk],4)}, v{t2}, s[{SW}:{SW+3}], s{s_hb} offen offset:{t*2048 + 32*kk}")
    def kglobal(b, soff): return [f"buffer_load_dwordx4 {vr(KF[b][kk],4)}, v{kg}, s[{SW}:{SW+3}], s{soff} offen offset:{32*kk}" for kk in range(2)]
    def vglobal(b, soff): return [f"buffer_load_dwordx4 {vr(VF[b][j],4)}, v{vg}, s[{SW}:{SW+3}], s{soff} offen offset:{32*j}" for j in range(2)]
    for x in kglobal(0, s_hb) + vglobal(0, s_hb): a(x)
    for t in range(2):
        for i in range(16): a(f"v_mov_b32 v{O[t]+i}, 0")
        a(f"v_mov_b32 v{L[t]}, 0")
    for i in range(8): a(f"v_mov_b32 v{P[1]+i}, 0")
    for i in range(8): a(f"v_mov_b32 v{VF[1][0]+i}, 0")
    a(f"v_lshrrev_b32 v{t2}, 4, v{lane}\nv_lshlrev_b32 v{t2}, 2, v{t2}\nv_and_b32 v{t3}, 15, v{lane}")
    a(f"v_cmp_eq_u32 vcc, v{t2}, v{t3}\nv_mov_b32 v{t2}, 0x3f803f80")
    for i in range(4): a(f"v_cndmask_b32 v{ONE+i}, 0, v{t2}, vcc")
    for i in range(1, 4):
        a(f"v_mov_b32 v{T[0]+i}, 0"); a(f"v_mov_b32 v{T[1]+i}, 0")
    def kread(b, buf, j): return [f"ds_read_b128 {vr(KF[b][kk],4)}, v{ka[kk]} offset:{buf*ABUF + j*2048}" for kk in range(2)]
    def vread(b, buf, j): return [f"ds_read_b128 {vr(VF[b][i],4)}, v{va[i]} offset:{buf*ABUF + j*2048}" for i in range(2)]
    def qk(t, b, cin):
        return [f"v_mfma_f32_32x32x16_bf16 {vr(S[t],16)}, {vr(KF[b][0],4)}, {vr(Q[t][0],4)}, {cin}",
                f"v_mfma_f32_32x32x16_bf16 {vr(S[t],16)}, {vr(KF[b][1],4)}, {vr(Q[t][1],4)}, {vr(S[t],16)}"]
    def pv(t, b):
        return [f"v_mfma_f32_32x32x16_bf16 {vr(O[t],16)}, {vr(VF[b][j],4)}, {vr(P[t]+4*j,4)}, {vr(O[t],16)}" for j in range(2)]
    def rowmax(dst, t):
        s = S[t]
        a(f"v_max3_f32 v{dst}, v{s}, v{s+1}, v{s+2}")
        for i in range(3, 15, 2): a(f"v_max3_f32 v{dst}, v{dst}, v{s+i}, v{s+i+1}")
        a(f"v_max_f32 v{dst}, v{dst}, v{s+15}")
        a(f"v_mov_b32 v{t2}, v{dst}")
        a(f"v_permlane32_swap_b32 v{dst}, v{t2}")
        a(f"v_max_f32 v{dst}, v{dst}, v{t2}")
    a("s_waitcnt vmcnt(2)")
    for x in qk(0, 0, "0") + qk(1, 0, "0"): a(x)
    rowmax(t3, 0)
    for i in range(16): a(f"v_sub_f32 v{NM[0]+i}, 0, v{t3}")
    for i in range(16): a(f"v_sub_f32 v{S[0]+i}, v{S[0]+i}, v{t3}")
    rowmax(t3, 1)
    for i in range(16): a(f"v_sub_f32 v{NM[1]+i}, 0, v{t3}")
    a(f"s_mov_b32 s{s_it}, 0")

    def ex(u, i): return f"v_exp_f32 v{E + i % 8}, v{S[u]+i}"
    def cv(u, i): return f"v_cvt_pk_bf16_f32 v{P[u]+i}, v{E + (2*i) % 8}, v{E + (2*i+1) % 8}"
    def ms(u, j): return f"v_mfma_f32_16x16x32_bf16 {vr(T[u],4)}, {vr(ONE,4)}, {vr(P[u]+4*j,4)}, {vr(T[u],4)}"
    def part(n, buf, extra):
        u = n & 1; p = u ^ 1; kl = (n >> 1) & 3
        kb = kl & 1
        if u == 0:
            rd = kread(kb ^ 1, buf, kl)
            mf = qk(1, kb, vr(NM[1], 16)) + pv(1, kb ^ 1)
        else:
            rd = vread(kb ^ 1, buf, kl)
            mf = qk(0, kb ^ 1, vr(NM[0], 16)) + pv(0, kb)
        ext = list(extra) + [None] * 4
        seq = [ex(u, 0), ms(p, 1), ex(u, 1), rd[0], ex(u, 2), ex(u, 3), mf[0], cv(u, 0), ex(u, 4), rd[1], cv(u, 1), ex(u, 5), ex(u, 6),
               mf[1], ex(u, 7), cv(u, 2), ext[0], ex(u, 8), cv(u, 3), ex(u, 9),
               mf[2], ex(u, 10), ext[1], ex(u, 11), cv(u, 4), ex(u, 12), ms(u, 0), cv(u, 5), ex(u, 13),
               mf[3], ex(u, 14), ext[2], ex(u, 15), cv(u, 6), ext[3], cv(u, 7)]
        o = opt.get("order", 1)
        if o == 1:
            seq = [ex(u, 0), ms(p, 1), ex(u, 1), ex(u, 2), ex(u, 3), mf[0], rd[0], cv(u, 0), ex(u, 4), cv(u, 1), ex(u, 5), ex(u, 6),
                   mf[1], rd[1], ex(u, 7), cv(u, 2), ex(u, 8), cv(u, 3), ex(u, 9),
                   mf[2], ex(u, 10), ex(u, 11), cv(u, 4), ex(u, 12), ms(u, 0), cv(u, 5), ex(u, 13),
                   mf[3], ex(u, 14), ex(u, 15), cv(u, 6), cv(u, 7)]
        if o == 2:
            seq = [ex(u, 0), ex(u, 1), ms(p, 1), ex(u, 2), ex(u, 3), mf[0], rd[0], cv(u, 0), ex(u, 4), cv(u, 1), ex(u, 5), ex(u, 6),
                   mf[1], rd[1], ex(u, 7), cv(u, 2), ex(u, 8), cv(u, 3), ex(u, 9),
                   mf[2], ex(u, 10), ex(u, 11), cv(u, 4), ex(u, 12), cv(u, 5), ms(u, 0), ex(u, 13), ex(u, 14),
                   mf[3], ex(u, 15), cv(u, 6), cv(u, 7)]
        if o == 3:
            seq = [ex(u, 0), ex(u, 1), mf[2], rd[0], ex(u, 2), ex(u, 3), cv(u, 0), ex(u, 4), mf[3], rd[1], cv(u, 1), ex(u, 5), ex(u, 6), ex(u, 7),
                   mf[0], cv(u, 2), ex(u, 8), cv(u, 3), ex(u, 9), ex(u, 10), mf[1], ex(u, 11), cv(u, 4), ex(u, 12), cv(u, 5), ex(u, 13),
                   ms(p, 0), ex(u, 14), ex(u, 15), ms(p, 1), cv(u, 6), cv(u, 7)]
        drop = opt.get("drop", ())
        for x in seq:
            if x is None: continue
            if "rd" in drop and isinstance(x, str) and x.startswith("ds_read"): continue
            for y in (x if isinstance(x, list) else [x]): a(y)
    if opt.get("prio"): a(f"s_setprio {opt['prio']}")
    a(f"L_{name}_loop:")
    for sg in range(4):
        st2.stamp()
        a("s_waitcnt vmcnt(0) lgkmcnt(0)")
        a("s_barrier")
        st2.stamp()
        a(f"v_max_f32 v{t2}, v{L[0]}, v{L[1]}")
        a(f"v_cmp_lt_f32 vcc, s{s_thr}, v{t2}")
        a(f"s_cbranch_vccnz L_{name}_stub{sg}")
        a(f"L_{name}_back{sg}:")
        for j in range(8):
            if j: a("s_waitcnt lgkmcnt(0)")
            part(8 * sg + j, sg, [])
    a(f"s_add_u32 s{s_it}, s{s_it}, 1\ns_cmp_lt_u32 s{s_it}, 4\ns_cbranch_scc1 L_{name}_loop")
    st2.stamp()
    a(ms(1, 1))
    for x in pv(1, 1): a(x)
    def finite_check():
        a(f"v_mul_f32 v{t5}, 0, v{L[0]}")
        a(f"v_fmac_f32 v{t5}, 0, v{L[1]}")
        for t in range(2):
            for i in range(16): a(f"v_fmac_f32 v{t5}, 0, v{O[t]+i}")
        a(f"v_cmp_u_f32 vcc, v{t5}, v{t5}")
    finite_check()
    a(f"s_cbranch_vccnz L_{name}_safe")
    a(f"L_{name}_fin:")
    a(f"s_lshl_b32 s{s_t}, s{s_qb}, 2\ns_add_u32 s{s_t}, s{s_t}, s{s_w}\ns_lshl_b32 s{s_t}, s{s_t}, 6")
    a(f"v_add_u32 v{t3}, s{s_t}, v{t0}")
    a(f"v_lshlrev_b32 v{t3}, 11, v{t3}")
    a(f"v_lshl_add_u32 v{t3}, v{t1}, 4, v{t3}")
    a(f"s_lshl_b32 s{s_t}, s{s_h}, 6\ns_add_u32 s{s_t}, s{s_t}, {WS_O}")
    for t in range(2):
        a(f"v_mov_b32 v{t2}, v{L[t]}")
        a(f"v_permlane32_swap_b32 v{L[t]}, v{t2}")
        a(f"v_add_f32 v{L[t]}, v{L[t]}, v{t2}")
        a(f"v_rcp_f32 v{L[t]}, v{L[t]}")
        o = O[t]
        for i in range(16): a(f"v_mul_f32 v{o+i}, v{o+i}, v{L[t]}")
        for i in range(8): a(f"v_cvt_pk_bf16_f32 v{o+i}, v{o+2*i}, v{o+2*i+1}")
        for pr in range(2):
            b = o + 4 * pr
            a(f"v_permlane32_swap_b32 v{b}, v{b+2}")
            a(f"v_permlane32_swap_b32 v{b+1}, v{b+3}")
        for pr in range(2):
            a(f"buffer_store_dwordx4 {vr(o+4*pr,4)}, v{t3}, s[{SW}:{SW+3}], s{s_t} offen offset:{pr*32}")
        if t == 0: a(f"s_add_u32 s{s_t}, s{s_t}, {32*2048}")
    a("s_waitcnt vmcnt(0)")
    st2.stamp()
    st2.dump(name + "a")
    a(f"L_{name}_end:")
    a("s_endpgm")
    for sg in range(4):
        a(f"L_{name}_stub{sg}:")
        a(f"s_mov_b32 s{s_ret}, {sg}")
        a(f"s_branch L_{name}_resc")
    a(f"L_{name}_resc:")
    a("s_nop 15")
    for t in range(2):
        a(f"v_mov_b32 v{t3}, v{L[t]}")
        a(f"v_mov_b32 v{t2}, v{L[t]}")
        a(f"v_permlane32_swap_b32 v{t3}, v{t2}")
        a(f"v_max_f32 v{t3}, v{t3}, v{t2}")
        a(f"v_frexp_exp_i32_f32 v{t3}, v{t3}")
        a(f"v_max_i32 v{t3}, 0, v{t3}")
        a(f"v_cvt_f32_i32 v{t4}, v{t3}")
        a(f"v_sub_u32 v{t3}, 0, v{t3}")
        for i in range(16): a(f"v_ldexp_f32 v{O[t]+i}, v{O[t]+i}, v{t3}")
        a(f"v_ldexp_f32 v{L[t]}, v{L[t]}, v{t3}")
        for i in range(16): a(f"v_sub_f32 v{NM[t]+i}, v{NM[t]+i}, v{t4}")
        if t == 0:
            for i in range(16): a(f"v_sub_f32 v{S[0]+i}, v{S[0]+i}, v{t4}")
        else:
            for i in range(8):
                a(f"v_lshlrev_b32 v{t2}, 16, v{P[1]+i}")
                a(f"v_and_b32 v{t5}, 0xffff0000, v{P[1]+i}")
                a(f"v_ldexp_f32 v{t2}, v{t2}, v{t3}")
                a(f"v_ldexp_f32 v{t5}, v{t5}, v{t3}")
                a(f"v_cvt_pk_bf16_f32 v{P[1]+i}, v{t2}, v{t5}")
    a("s_nop 3")
    for sg in range(3):
        a(f"s_cmp_eq_u32 s{s_ret}, {sg}")
        a(f"s_cbranch_scc1 L_{name}_back{sg}")
    a(f"s_branch L_{name}_back3")
    a(f"L_{name}_safe:")
    a("s_waitcnt vmcnt(0) lgkmcnt(0)")
    a("s_nop 15")
    M = [NM[0], NM[1]]
    for t in range(2):
        for i in range(16): a(f"v_mov_b32 v{O[t]+i}, 0")
        for i in range(4): a(f"v_mov_b32 v{L[t]+i}, 0")
        a(f"v_mov_b32 v{M[t]}, 0xff7fffff")
    a(f"s_mov_b32 s{s_so}, s{s_hb}\ns_mov_b32 s{s_it}, 0")
    a(f"L_{name}_safeloop:")
    for x in kglobal(0, s_so) + vglobal(0, s_so): a(x)
    a("s_waitcnt vmcnt(0)")
    for t in range(2):
        for x in qk(t, 0, "0"): a(x)
        rowmax(t3, t)
        a(f"v_max_f32 v{t3}, v{t3}, v{M[t]}")
        a(f"v_sub_f32 v{t4}, v{M[t]}, v{t3}")
        a(f"v_exp_f32 v{t4}, v{t4}")
        a(f"v_mov_b32 v{M[t]}, v{t3}")
        for i in range(16): a(f"v_sub_f32 v{S[t]+i}, v{S[t]+i}, v{t3}")
        for i in range(16): a(f"v_mul_f32 v{O[t]+i}, v{O[t]+i}, v{t4}")
        a(f"v_mul_f32 v{L[t]}, v{L[t]}, v{t4}")
        for j in range(4):
            for i in range(4 * j, 4 * j + 4): a(ex(t, i))
            a(cv(t, 2 * j)); a(cv(t, 2 * j + 1))
            if j & 1: a(ms(t, j >> 1))
        for x in pv(t, 0): a(x)
    a(f"s_add_u32 s{s_so}, s{s_so}, 2048")
    a(f"s_add_u32 s{s_it}, s{s_it}, 1\ns_cmp_lt_u32 s{s_it}, 64\ns_cbranch_scc1 L_{name}_safeloop")
    a("s_nop 15")
    a(f"s_branch L_{name}_fin")
    nv = V.n
    if with_conv:
        a(f"L_{name}_conv:")
        V2 = Regs(1)
        tid = V2.alloc()
        a(f"v_subrev_u32 v{tid}, 256, v0")
        a(f"s_sub_u32 s3, s{s_w}, 4")
        if opt.get("cprio"): a(f"s_setprio {opt['cprio']}")
        conv_body(a, name, V2, 8, ATT_LDS, tid, 3, st2, dict(ABUF=ABUF, WS_K=WS_K, WS_V=WS_V))
        st2.stamp(); st2.dump(name + "c")
        a("s_endpgm")
        nv = max(nv, V2.n)
    lines, n = pad_hazards(a.lines)
    print(name, "hazard pads:", n, "vgprs", V.n, nv)
    if asmlib.STAMPS: nv = 251
    return lines, nv, 102, ATT_LDS + (CONV_LDS if with_conv else 0)
```

```python
from asmlib import *
from gemm import srd, f2u

ZS = 6912
YS = 8704
CONV_LDS = 8 * ZS + 4 * YS

class VM:
    def __init__(self, a): self.a = a; self.ops = []
    def issue(self, text, tag): self.a(text); self.ops.append(tag)
    def cnt(self, tag):
        idx = max(i for i, t in enumerate(self.ops) if t == tag)
        return min(63, len(self.ops) - 1 - idx)

def conv_body(a, name, V, sbase, cb, tid, wv, stp=None):
    ZB = cb; YB = cb + 8 * ZS
    S = sbase
    SK = S; SV = S + 4; SQ = S + 8; SH = S + 12; SO = S + 16
    sp = S + 20; ssk = S + 36; sD = S + 52
    s_d0 = S + 56; s_t = S + 57; s_row = S + 58; s_u = S + 59; s_zb = S + 60; s_r0 = S + 61
    acc = [V.alloc(16, 4) for _ in range(2)]
    NA = 4
    AF = [[V.alloc(4, 4) for _ in range(2)] for _ in range(NA)]
    ZF = [[V.alloc(4, 4) for _ in range(2)] for _ in range(2)]
    kr = V.alloc(24, 4); vv = V.alloc(20, 4)
    kf = V.alloc(12); kv = V.alloc(9); pk = ZF[0][0]; assert ZF[0][1] == pk + 4
    lane = V.alloc(); t0 = V.alloc(); t1 = V.alloc(); t2 = V.alloc(); t3 = V.alloc(); za = V.alloc(); ha = V.alloc(); ya = V.alloc(); zw = V.alloc(); ga = V.alloc()
    vm = VM(a)
    nb = [0]
    def BAR():
        if stp: stp.stamp()
        a("s_barrier"); nb[0] += 1
        if stp: stp.stamp()

    a(f"s_load_dwordx8 s[{sp}:{sp+7}], s[0:1], 0")
    a(f"s_load_dwordx4 s[{sp+8}:{sp+11}], s[0:1], 32")
    a(f"s_load_dwordx2 s[{sp+12}:{sp+13}], s[0:1], 72")
    a(f"s_and_b32 s{s_d0}, s2, 7\ns_lshl_b32 s{s_d0}, s{s_d0}, 5\ns_lshr_b32 s{s_t}, s2, 3\ns_add_u32 s{s_d0}, s{s_d0}, s{s_t}\ns_lshl_b32 s{s_d0}, s{s_d0}, 2")
    a(f"v_and_b32 v{lane}, 63, v{tid}")
    a(f"s_mov_b32 s{s_zb}, {ZB}")
    a(f"s_lshl_b32 s{s_r0}, s{wv}, 20")
    a("s_waitcnt lgkmcnt(0)")
    srd(a, SQ, sp, 4 << 20); srd(a, SK, sp + 2, 4 << 20); srd(a, SV, sp + 4, 4 << 20); srd(a, SH, sp + 8, 4 << 20); srd(a, SO, sp + 12, 8 << 20)
    a(f"s_lshl_b32 s{s_t}, s{s_d0}, 3")
    a(f"s_add_u32 s{sp+6}, s{sp+6}, s{s_t}\ns_addc_u32 s{sp+7}, s{sp+7}, 0")
    a(f"s_lshl_b32 s{s_t}, s{s_d0}, 1")
    a(f"s_add_u32 s{sp+10}, s{sp+10}, s{s_t}\ns_addc_u32 s{sp+11}, s{sp+11}, 0")
    a(f"s_load_dwordx8 s[{ssk+8}:{ssk+15}], s[{sp+6}:{sp+7}], 0")
    a(f"s_load_dwordx2 s[{sD+2}:{sD+3}], s[{sp+10}:{sp+11}], 0")
    a(f"s_add_u32 s{s_r0}, s{s_r0}, s{s_t}")
    a(f"v_lshlrev_b32 v{ga}, 11, v{lane}")
    a(f"v_add_u32 v{ga}, s{s_r0}, v{ga}")
    a(f"v_and_b32 v{t0}, 3, v{lane}")
    a(f"v_lshlrev_b32 v{t0}, 11, v{t0}")
    a(f"v_add_u32 v{t0}, s{s_r0}, v{t0}")
    a(f"v_subrev_u32 v{t0}, {4*2048}, v{t0}")
    G = kr
    vm.issue(f"buffer_load_dwordx2 {vr(G+32,2)}, v{t0}, s[{SK}:{SK+3}], 0 offen", "g")
    vm.issue(f"buffer_load_dwordx2 {vr(G+34,2)}, v{t0}, s[{SV}:{SV+3}], 0 offen", "g")
    def gather(i):
        vm.issue(f"buffer_load_dwordx2 {vr(G+2*i,2)}, v{ga}, s[{SK}:{SK+3}], 0 offen", "g")
        vm.issue(f"buffer_load_dwordx2 {vr(G+16+2*i,2)}, v{ga}, s[{SV}:{SV+3}], 0 offen", "g")
        if i < 7: a(f"v_add_u32 v{ga}, {64*2048}, v{ga}")
    gather(0); gather(1)
    a(f"s_add_u32 s{s_row}, s{s_d0}, s{wv}\ns_lshl_b32 s{s_row}, s{s_row}, 12")
    a(f"v_and_b32 v{t2}, 31, v{lane}")
    a(f"v_lshrrev_b32 v{t3}, 5, v{lane}")
    a(f"v_lshlrev_b32 v{ha}, 2, v{t2}")
    a(f"v_lshl_add_u32 v{ha}, v{t3}, 4, v{ha}")
    for i in range(4): a(f"v_mov_b32 v{pk+i}, 0")
    a(f"v_and_b32 v{t0}, 31, v{tid}")
    a(f"v_lshrrev_b32 v{t1}, 3, v{t0}")
    a(f"v_add_lshl_u32 v{t0}, v{t0}, v{t1}, 4")
    a(f"v_lshrrev_b32 v{t1}, 5, v{tid}")
    a(f"v_mul_u32_u24 v{t1}, {ZS}, v{t1}")
    a(f"v_add3_u32 v{t0}, v{t0}, v{t1}, s{s_zb}")
    for i in range(4):
        a(f"ds_write_b128 v{t0}, {vr(pk,4)} offset:{(256 + 32*i)*16 + ((256+32*i)>>3)*16}")
    a(f"v_sub_u32 v{zw}, 255, v{tid}")
    a(f"v_lshrrev_b32 v{t1}, 3, v{zw}")
    a(f"v_add_lshl_u32 v{zw}, v{zw}, v{t1}, 4")
    a(f"v_add_u32 v{zw}, s{s_zb}, v{zw}")
    a(f"v_and_b32 v{t1}, 15, v{lane}")
    a(f"v_sub_u32 v{t1}, 31, v{t1}")
    a(f"v_mul_u32_u24 v{za}, 144, v{t1}")
    a(f"v_lshl_add_u32 v{za}, v{t3}, 4, v{za}")
    a(f"v_bfe_u32 v{t1}, v{lane}, 4, 1")
    a(f"v_mul_u32_u24 v{t1}, {ZS}, v{t1}")
    a(f"v_add_u32 v{za}, v{za}, v{t1}")
    a(f"s_mul_i32 s{s_u}, s{wv}, {2*ZS}")
    a(f"v_add_u32 v{za}, s{s_u}, v{za}")
    a(f"v_add_u32 v{za}, {ZB - 16*144}, v{za}")
    a(f"v_and_b32 v{t1}, 15, v{lane}")
    a(f"v_mul_u32_u24 v{ya}, 272, v{t1}")
    a(f"v_lshl_add_u32 v{ya}, v{t3}, 5, v{ya}")
    a(f"v_bfe_u32 v{t1}, v{lane}, 4, 1")
    a(f"v_lshl_add_u32 v{ya}, v{t1}, 2, v{ya}")
    a(f"s_mul_i32 s{s_u}, s{wv}, {YS}\ns_add_u32 s{s_u}, s{s_u}, {YB}")
    a(f"v_add_u32 v{ya}, s{s_u}, v{ya}")
    for T in range(2):
        for i in range(16): a(f"v_mov_b32 v{acc[T]+i}, 0")
    a("s_waitcnt lgkmcnt(0)")
    for i in range(8):
        a(f"s_lshl_b32 s{ssk+2*i}, s{ssk+8+i}, 16")
        a(f"s_and_b32 s{ssk+2*i+1}, s{ssk+8+i}, 0xffff0000")
    for i in range(2):
        a(f"s_lshl_b32 s{sD+2*i}, s{sD+2+i}, 16")
        a(f"s_and_b32 s{sD+2*i+1}, s{sD+2+i}, 0xffff0000")
    BAR()
    gather(2); gather(3)
    a(f"v_lshlrev_b32 v{t0}, 4, v{lane}")
    for i in range(4):
        vm.issue(f"buffer_load_dwordx4 {vr(ZF[i>>1][i&1],4)}, v{t0}, s[{SH}:{SH+3}], s{s_row} offen offset:{1024*i}", "w")
    BAR()
    gather(4); gather(5)
    BAR()
    gather(6); gather(7)
    BAR()
    def aload(k, half):
        kap = k + 64 * half
        vm.issue(f"buffer_load_dwordx4 {vr(AF[k % NA][half],4)}, v{ha}, s[{SH}:{SH+3}], s{s_row} offen offset:{32*kap - 124}", f"a{k}")
    a(f"v_mov_b32 v{t3}, 0x80000000")
    for k in range(4):
        for i in range(4):
            a(f"v_add_u32 v{t1}, {32*k + 4*i - 124}, v{ha}")
            a(f"v_cmp_gt_i32 vcc, 0, v{t1}")
            a(f"v_cndmask_b32 v{t1}, v{t1}, v{t3}, vcc")
            vm.issue(f"buffer_load_dword v{AF[k][0]+i}, v{t1}, s[{SH}:{SH+3}], s{s_row} offen", f"a{k}")
        aload(k, 1)
    BAR()
    a(f"v_lshlrev_b32 v{t0}, 3, v{lane}")
    a(f"v_add_u32 v{t0}, s{s_u}, v{t0}")
    a(f"v_and_b32 v{t1}, 3, v{lane}")
    a(f"v_lshlrev_b32 v{t1}, 3, v{t1}")
    a(f"v_add_u32 v{t1}, s{s_u}, v{t1}")
    a(f"s_waitcnt vmcnt({vm.cnt('g')})")
    a(f"ds_write_b64 v{t1}, {vr(G+32,2)}")
    a(f"ds_write_b64 v{t1}, {vr(G+34,2)} offset:4160")
    for i in range(8):
        a(f"ds_write_b64 v{t0}, {vr(G+2*i,2)} offset:{32 + 512*i}")
        a(f"ds_write_b64 v{t0}, {vr(G+16+2*i,2)} offset:{4160 + 32 + 512*i}")
    a(f"v_lshlrev_b32 v{t0}, 6, v{lane}")
    a(f"v_add_u32 v{t0}, s{s_u}, v{t0}")
    a("s_waitcnt lgkmcnt(0)")
    for i in range(6): a(f"ds_read_b128 {vr(kr+4*i,4)}, v{t0} offset:{16*i}")
    for i in range(5): a(f"ds_read_b128 {vr(vv+4*i,4)}, v{t0} offset:{4160 + 16 + 16*i}")
    a("s_waitcnt lgkmcnt(0)")
    for c in range(4):
        dw = c >> 1
        def unp(dst, src):
            if c & 1: a(f"v_and_b32 v{dst}, 0xffff0000, v{src}")
            else: a(f"v_lshlrev_b32 v{dst}, 16, v{src}")
        for r in range(12): unp(kf + r, kr + 2 * r + dw)
        for r in range(9):
            a(f"v_mul_f32 v{kv+r}, s{ssk+4*c+3}, v{kf+r}")
            a(f"v_fmac_f32 v{kv+r}, s{ssk+4*c+2}, v{kf+r+1}")
            a(f"v_fmac_f32 v{kv+r}, s{ssk+4*c+1}, v{kf+r+2}")
            a(f"v_fmac_f32 v{kv+r}, s{ssk+4*c+0}, v{kf+r+3}")
            unp(t1, vv + 2 * (r + 1) + dw)
            a(f"v_mul_f32 v{kv+r}, v{kv+r}, v{t1}")
        for i in range(4):
            a(f"v_cvt_pk_bf16_f32 v{pk+4+i}, v{kv+8-2*i}, v{kv+7-2*i}")
            a(f"v_cvt_pk_bf16_f32 v{pk+i}, v{kv+7-2*i}, v{kv+6-2*i}")
        a(f"ds_write_b128 v{zw}, {vr(pk,4)} offset:{(2*c)*ZS}")
        a(f"ds_write_b128 v{zw}, {vr(pk+4,4)} offset:{(2*c+1)*ZS}")
    a("s_waitcnt lgkmcnt(0)")
    BAR()
    def zoff(k): return 32 * k + 16 * (k >> 2)
    def zread(k):
        return [f"ds_read_b128 {vr(ZF[k&1][0],4)}, v{za} offset:{16*144 + zoff(k)}",
                f"ds_read_b128 {vr(ZF[k&1][1],4)}, v{za} offset:{zoff(k)}"]
    qr = kr
    a(f"v_lshlrev_b32 v{ga}, 13, v{tid}")
    a(f"v_add_u32 v{ga}, s{s_t}, v{ga}")
    def qload(i):
        g2, r = i >> 2, i & 3
        vm.issue(f"buffer_load_dwordx2 {vr(qr+8*g2+2*r,2)}, v{ga}, s[{SQ}:{SQ+3}], 0 offen offset:{(r%2)*2048}", "q")
        if r == 1: a(f"v_add_u32 v{ga}, 4096, v{ga}")
        if r == 3: a(f"v_add_u32 v{ga}, {1024*2048 - 4096}, v{ga}")
    for x in zread(0): a(x)
    for k in range(64):
        nxt = zread(k + 1) if k + 1 < 64 else []
        a(f"s_waitcnt vmcnt({vm.cnt(f'a{k}')}) lgkmcnt(0)")
        for x in nxt: a(x)
        A0, A1 = AF[k % NA]
        F, Gz = ZF[k & 1]
        a(f"v_mfma_f32_32x32x16_bf16 {vr(acc[0],16)}, {vr(A0,4)}, {vr(F,4)}, {vr(acc[0],16)}")
        a(f"v_mfma_f32_32x32x16_bf16 {vr(acc[1],16)}, {vr(A0,4)}, {vr(Gz,4)}, {vr(acc[1],16)}")
        a(f"v_mfma_f32_32x32x16_bf16 {vr(acc[1],16)}, {vr(A1,4)}, {vr(F,4)}, {vr(acc[1],16)}")
        if k + NA < 64:
            aload(k + NA, 0); aload(k + NA, 1)
        if k % 7 == 6 and k < 63:
            if k // 7 < 8: qload(k // 7)
            BAR()
    for T in range(2):
        for i in range(16):
            aa, b = i >> 2, i & 3
            a(f"ds_write_b32 v{ya}, v{acc[T]+i} offset:{(16*aa + 2*b)*4 + T*16*272}")
    a("s_waitcnt lgkmcnt(0)")
    BAR()
    assert nb[0] == 16, nb
    a(f"v_lshrrev_b32 v{t1}, 4, v{tid}")
    a(f"v_add_lshl_u32 v{t1}, v{t1}, v{tid}, 4")
    a(f"v_add_u32 v{t1}, {YB}, v{t1}")
    a(f"v_sub_u32 v{t2}, 255, v{tid}")
    a(f"v_lshrrev_b32 v{t3}, 4, v{t2}")
    a(f"v_lshlrev_b32 v{t3}, 4, v{t3}")
    a(f"v_lshl_add_u32 v{t2}, v{t2}, 3, v{t3}")
    a(f"v_add_u32 v{t2}, s{s_zb}, v{t2}")
    yr = acc[0]; zr = acc[1]
    a(f"v_lshlrev_b32 v{t0}, 14, v{tid}")
    a(f"v_add_u32 v{t0}, s{s_t}, v{t0}")
    a("s_waitcnt vmcnt(0)")
    for g2 in range(2):
        for c in range(4):
            a(f"ds_read_b128 {vr(yr+4*c,4)}, v{t1} offset:{c*YS + g2*16*272}")
            a(f"ds_read_b64 {vr(zr+2*c,2)}, v{t2} offset:{(2*c+1)*ZS + (1-g2)*16*144}")
        a("s_waitcnt lgkmcnt(0)")
        for r in range(4):
            for c in range(4):
                e = 3 - r
                src = zr + 2 * c + (e >> 1)
                if e & 1: a(f"v_and_b32 v{kf+c}, 0xffff0000, v{src}")
                else: a(f"v_lshlrev_b32 v{kf+c}, 16, v{src}")
                a(f"v_fma_f32 v{kf+c}, v{kf+c}, s{sD+c}, v{yr+4*c+r}")
                qs = qr + 8 * g2 + 2 * r + (c >> 1)
                if c & 1: a(f"v_and_b32 v{kf+4+c}, 0xffff0000, v{qs}")
                else: a(f"v_lshlrev_b32 v{kf+4+c}, 16, v{qs}")
                a(f"v_mul_f32 v{kf+c}, v{kf+c}, v{kf+4+c}")
            a(f"v_cvt_pk_bf16_f32 v{pk+2*r}, v{kf}, v{kf+1}")
            a(f"v_cvt_pk_bf16_f32 v{pk+2*r+1}, v{kf+2}, v{kf+3}")
            a(f"buffer_store_dwordx2 {vr(pk+2*r,2)}, v{t0}, s[{SO}:{SO+3}], 0 offen")
            a(f"v_add_u32 v{t0}, {4096 if r < 3 else 1024*4096 - 3*4096}, v{t0}")
```

```python
from asmlib import *
from helpers import srd, WS_Z, ZCH, WS_ZO
from conv2 import VM

ZS = 6912
YS = 8704
CONV_LDS = 8 * ZS + 4 * YS

def conv_body(a, name, V, sbase, cb, tid, wv, stp=None, kv=None):
    ZB = cb; YB = cb + 8 * ZS
    S = sbase
    SZ = S; SH = S + 4; SO = S + 8; SQ = S + 12; SWo = S + 16
    sp = S + 20; sD = S + 36
    s_d = S + 40; s_t = S + 41; s_row = S + 42; s_u = S + 43; s_z = S + 44; s_zg = S + 45
    acc = [V.alloc(16, 4) for _ in range(2)]
    NA = 4
    AF = [[V.alloc(4, 4) for _ in range(2)] for _ in range(NA)]
    ZF = [[V.alloc(4, 4) for _ in range(2)] for _ in range(2)]
    W = V.alloc(16, 4)
    y = V.alloc(32, 4); kz = V.alloc(16, 4)
    lane = V.alloc(); t0 = V.alloc(); t1 = V.alloc(); t2 = V.alloc(); t3 = V.alloc(); za = V.alloc(); ha = V.alloc(); ya = V.alloc()
    vm = VM(a)
    nb = [0]
    gd = V.alloc()
    SKV = S + 48; s_sk = S + 52; s_sv = S + 53; s_kl = S + 54
    def kvdma(st):
        if st > 15: return
        ABUF = kv["ABUF"]
        for j, so in ((0, s_sk), (1, s_sv)):
            a(f"s_add_u32 m0, s{s_kl}, {(st % 4)*ABUF + j*8192}")
            vm.issue(f"buffer_load_dwordx4 v{gd}, s[{SKV}:{SKV+3}], s{so} offen lds", f"kv{st}")
            vm.issue(f"buffer_load_dwordx4 v{gd}, s[{SKV}:{SKV+3}], s{so} offen offset:1024 lds", f"kv{st}")
        a(f"s_add_u32 s{s_sk}, s{s_sk}, 8192\ns_add_u32 s{s_sv}, s{s_sv}, 8192")
    def BAR():
        if stp: stp.stamp()
        a(f"s_waitcnt vmcnt({vm.cnt(f'kv{nb[0]}')})")
        a("s_barrier"); nb[0] += 1
        if stp: stp.stamp()
        kvdma(nb[0] + 2)
    a(f"s_load_dwordx2 s[{sp}:{sp+1}], s[0:1], 0")
    a(f"s_load_dwordx4 s[{sp+4}:{sp+7}], s[0:1], 32")
    a(f"s_load_dwordx2 s[{sp+8}:{sp+9}], s[0:1], 64")
    a(f"s_load_dwordx2 s[{sp+10}:{sp+11}], s[0:1], 88")
    a(f"s_and_b32 s{s_d}, s2, 7\ns_lshl_b32 s{s_d}, s{s_d}, 5\ns_lshr_b32 s{s_t}, s2, 3\ns_add_u32 s{s_d}, s{s_d}, s{s_t}\ns_lshl_b32 s{s_d}, s{s_d}, 2\ns_add_u32 s{s_d}, s{s_d}, s{wv}")
    a(f"v_and_b32 v{lane}, 63, v{tid}")
    a(f"s_lshl_b32 s{s_row}, s{s_d}, 12")
    a(f"s_mul_i32 s{s_zg}, s{s_d}, {ZCH}")
    a(f"s_mul_i32 s{s_z}, s{wv}, {2*ZS}\ns_add_u32 s{s_z}, s{s_z}, {ZB}")
    a(f"s_mul_i32 s{s_u}, s{wv}, {YS}\ns_add_u32 s{s_u}, s{s_u}, {YB}")
    a(f"v_lshlrev_b32 v{t0}, 4, v{lane}")
    a(f"s_and_b32 s{s_sk}, s2, 7\ns_lshl_b32 s{s_sk}, s{s_sk}, 2\ns_lshr_b32 s{s_sv}, s2, 6\ns_add_u32 s{s_sk}, s{s_sk}, s{s_sv}\ns_lshl_b32 s{s_sk}, s{s_sk}, 17")
    a(f"s_add_u32 s{s_sv}, s{s_sk}, {kv['WS_V']}\ns_add_u32 s{s_sk}, s{s_sk}, {kv['WS_K']}")
    a(f"s_lshl_b32 s{s_kl}, s{wv}, 11")
    a(f"v_lshrrev_b32 v{t1}, 4, v{lane}")
    a(f"v_and_b32 v{t3}, 3, v{lane}")
    a(f"v_xor_b32 v{t3}, v{t3}, v{t1}")
    a(f"v_lshrrev_b32 v{gd}, 2, v{lane}")
    a(f"v_lshlrev_b32 v{gd}, 6, v{gd}")
    a(f"v_lshl_add_u32 v{gd}, v{t3}, 4, v{gd}")
    a(f"v_add_u32 v{gd}, s{s_kl}, v{gd}")
    a(f"v_add_u32 v{gd}, 2048, v{gd}")
    a("s_waitcnt lgkmcnt(0)")
    srd(a, SKV, sp + 10, 16 << 20)
    for st in range(2): kvdma(st)
    srd(a, SZ, sp + 10, 1024 * ZCH, WS_Z); srd(a, SH, sp + 4, 4 << 20); srd(a, SO, sp + 10, 4 << 20, WS_ZO)
    srd(a, SQ, sp, 4 << 20); srd(a, SWo, sp + 8, 2 << 20)
    a(f"s_and_b32 s{s_t}, s{s_d}, 0xfffffffe\ns_lshl_b32 s{s_t}, s{s_t}, 1")
    a(f"s_add_u32 s{sp+6}, s{sp+6}, s{s_t}\ns_addc_u32 s{sp+7}, s{sp+7}, 0")
    a(f"s_load_dword s{sD}, s[{sp+6}:{sp+7}], 0")
    a(f"v_and_b32 v{t2}, 31, v{lane}")
    a(f"v_lshrrev_b32 v{t3}, 5, v{lane}")
    a(f"v_lshlrev_b32 v{ha}, 2, v{t2}")
    a(f"v_lshl_add_u32 v{ha}, v{t3}, 4, v{ha}")
    a(f"v_and_b32 v{t1}, 15, v{lane}")
    a(f"v_sub_u32 v{t1}, 31, v{t1}")
    a(f"v_mul_u32_u24 v{za}, 144, v{t1}")
    a(f"v_lshl_add_u32 v{za}, v{t3}, 4, v{za}")
    a(f"v_bfe_u32 v{t1}, v{lane}, 4, 1")
    a(f"v_mul_u32_u24 v{t1}, {ZS}, v{t1}")
    a(f"v_add3_u32 v{za}, v{za}, v{t1}, s{s_z}")
    a(f"v_subrev_u32 v{za}, {16*144}, v{za}")
    a(f"v_and_b32 v{t1}, 15, v{lane}")
    a(f"v_mul_u32_u24 v{ya}, 272, v{t1}")
    a(f"v_lshl_add_u32 v{ya}, v{t3}, 5, v{ya}")
    a(f"v_bfe_u32 v{t1}, v{lane}, 4, 1")
    a(f"v_lshl_add_u32 v{ya}, v{t1}, 2, v{ya}")
    a(f"v_add_u32 v{ya}, s{s_u}, v{ya}")
    for T in range(2):
        for i in range(16): a(f"v_mov_b32 v{acc[T]+i}, 0")
    nb[0] = 0
    if stp: stp.stamp()
    a(f"s_waitcnt vmcnt({vm.cnt('kv0')})")
    a("s_barrier"); nb[0] += 1
    if stp: stp.stamp()
    kvdma(2); kvdma(3)
    for cp in range(2):
        for i in range(5):
            a(f"s_add_u32 m0, s{s_z}, {cp*ZS + i*1024}")
            a(f"s_add_u32 s{s_t}, s{s_zg}, {cp*4608 + i*1024}")
            vm.issue(f"buffer_load_dwordx4 v{t0}, s[{SZ}:{SZ+3}], s{s_t} offen lds", "z")
    for i in range(4):
        vm.issue(f"buffer_load_dwordx4 {vr(W+4*i,4)}, v{t0}, s[{SH}:{SH+3}], s{s_row} offen offset:{1024*i}", "w")
    BAR()
    def aload(k, half):
        kap = k + 64 * half
        vm.issue(f"buffer_load_dwordx4 {vr(AF[k % NA][half],4)}, v{ha}, s[{SH}:{SH+3}], s{s_row} offen offset:{32*kap - 124}", f"a{k}")
    a(f"v_mov_b32 v{t3}, 0x80000000")
    for k in range(4):
        for i in range(4):
            a(f"v_add_u32 v{t1}, {32*k + 4*i - 124}, v{ha}")
            a(f"v_cmp_gt_i32 vcc, 0, v{t1}")
            a(f"v_cndmask_b32 v{t1}, v{t1}, v{t3}, vcc")
            vm.issue(f"buffer_load_dword v{AF[k][0]+i}, v{t1}, s[{SH}:{SH+3}], s{s_row} offen", f"a{k}")
        aload(k, 1)
    BAR()
    a(f"s_waitcnt vmcnt({vm.cnt('z')})")
    a(f"v_add_u32 v{t1}, s{s_z}, v{t0}")
    for cp in range(2):
        for i in range(3):
            off = cp * ZS + 4608 + min(i * 1024, 2304 - 1024)
            a(f"ds_write_b128 v{t1}, {vr(acc[0],4)} offset:{off}")
    a("s_waitcnt lgkmcnt(0)")
    a(f"s_lshl_b32 s{sD+1}, s{sD}, 16\ns_and_b32 s{sD}, s{sD}, 0xffff0000\ns_and_b32 s{s_t}, s{wv}, 1\ns_cmp_eq_u32 s{s_t}, 0\ns_cselect_b32 s{sD}, s{sD+1}, s{sD}")
    def zoff(k): return 32 * k + 16 * (k >> 2)
    def zread(k):
        return [f"ds_read_b128 {vr(ZF[k&1][0],4)}, v{za} offset:{16*144 + zoff(k)}",
                f"ds_read_b128 {vr(ZF[k&1][1],4)}, v{za} offset:{zoff(k)}"]
    a(f"s_lshl_b32 s{s_t}, s2, 2\ns_add_u32 s{s_t}, s{s_t}, s{wv}")
    a(f"s_lshl_b32 s{s_zg}, s{s_t}, 12\ns_lshl_b32 s{s_t}, s{s_t}, 11")
    pf = [f"buffer_load_dwordx4 {vr(W+4*i,4)}, v{t0}, s[{SQ}:{SQ+3}], s{s_zg} offen offset:{1024*i}" for i in range(4)] + \
         [f"buffer_load_dwordx4 {vr(W+4*i,4)}, v{t0}, s[{SWo}:{SWo+3}], s{s_t} offen offset:{1024*i}" for i in range(2)]
    for x in zread(0): a(x)
    ends = []
    acc_ = 0
    for cnt_ in [5, 6, 6, 6, 6, 6, 6, 6, 6, 6, 5]:
        acc_ += cnt_; ends.append(acc_ - 1)
    for k in range(64):
        nxt = zread(k + 1) if k + 1 < 64 else []
        a(f"s_waitcnt vmcnt({vm.cnt(f'a{k}')}) lgkmcnt(0)")
        for x in nxt: a(x)
        A0, A1 = AF[k % NA]
        F, Gz = ZF[k & 1]
        a(f"v_mfma_f32_32x32x16_bf16 {vr(acc[0],16)}, {vr(A0,4)}, {vr(F,4)}, {vr(acc[0],16)}")
        a(f"v_mfma_f32_32x32x16_bf16 {vr(acc[1],16)}, {vr(A0,4)}, {vr(Gz,4)}, {vr(acc[1],16)}")
        a(f"v_mfma_f32_32x32x16_bf16 {vr(acc[1],16)}, {vr(A1,4)}, {vr(F,4)}, {vr(acc[1],16)}")
        if k + NA < 64:
            aload(k + NA, 0); aload(k + NA, 1)
        if k in ends:
            if pf: vm.issue(pf.pop(0), "p")
            BAR()
    for T in range(2):
        for i in range(16):
            aa, b = i >> 2, i & 3
            a(f"ds_write_b32 v{ya}, v{acc[T]+i} offset:{(16*aa + 2*b)*4 + T*16*272}")
    a(f"v_lshrrev_b32 v{t1}, 3, v{lane}")
    a(f"v_lshlrev_b32 v{t1}, 4, v{t1}")
    a(f"v_lshl_add_u32 v{t1}, v{lane}, 5, v{t1}")
    a(f"v_add_u32 v{t1}, s{s_u}, v{t1}")
    a(f"v_sub_u32 v{t2}, 63, v{lane}")
    a(f"v_lshrrev_b32 v{t3}, 3, v{t2}")
    a(f"v_add_lshl_u32 v{t2}, v{t2}, v{t3}, 4")
    a(f"v_add_u32 v{t2}, s{s_z}, v{t2}")
    a("s_waitcnt lgkmcnt(0)")
    for j in range(4):
        a(f"ds_read_b128 {vr(y+8*j,4)}, v{t1} offset:{j*8*272}")
        a(f"ds_read_b128 {vr(y+8*j+4,4)}, v{t1} offset:{j*8*272 + 16}")
        a(f"ds_read_b128 {vr(kz+4*j,4)}, v{t2} offset:{ZS + (3-j)*8*144}")
    BAR()
    a("s_waitcnt lgkmcnt(0)")
    for j in range(4):
        for r in range(8):
            e = 7 - r
            src = kz + 4 * j + (e >> 1)
            if e & 1: a(f"v_and_b32 v{t3}, 0xffff0000, v{src}")
            else: a(f"v_lshlrev_b32 v{t3}, 16, v{src}")
            a(f"v_fmac_f32 v{y+8*j+r}, s{sD}, v{t3}")
        for i in range(4):
            a(f"v_cvt_pk_bf16_f32 v{y+8*j+i}, v{y+8*j+2*i}, v{y+8*j+2*i+1}")
        vm.issue(f"buffer_store_dwordx4 {vr(y+8*j,4)}, v{t0}, s[{SO}:{SO+3}], s{s_row} offen offset:{1024*j}", "o")
    BAR()
    assert nb[0] == 16, nb
    a("s_waitcnt vmcnt(0)")
```

```python
from asmlib import *
import asmlib
from helpers import helper1, helper3

WS_Q = 0
WS_K = 4 << 20
WS_V = 8 << 20
WS_O = 12 << 20
QSCALE = (32 ** -0.5) * 1.4426950408889634

def f2u(x):
    import struct
    return struct.unpack("<I", struct.pack("<f", x))[0]

def srd(a, s, base_lo, nbytes, add=0):
    if add:
        a(f"s_add_u32 s{s}, s{base_lo}, {add}")
        a(f"s_addc_u32 s{s+1}, s{base_lo+1}, 0")
        a(f"s_and_b32 s{s+1}, s{s+1}, 0xffff")
    else:
        a(f"s_mov_b32 s{s}, s{base_lo}")
        a(f"s_and_b32 s{s+1}, s{base_lo+1}, 0xffff")
    a(f"s_mov_b32 s{s+2}, {nbytes}")
    a(f"s_mov_b32 s{s+3}, 0x20000")

def gen_gemm(name, mode, hb=(0, 2)):
    a = Asm()
    nseg = 3 if mode == "qkv" else 1
    ldw = 6144 if mode == "qkv" else 2048
    segstride = 2048
    XB = 16384; WB = 8192 * nseg; SB = XB + WB
    NB = 3 if mode == "qkv" else 5
    NST = 16
    nx = 4; nw = 2 * nseg; D = nx + nw
    per_reg = 65536 // SB
    nreg = (NB + per_reg - 1) // per_reg

    V = Regs(1)
    acc = [[V.alloc(16, 4) for t in range(nseg)] for mb in range(2)]
    xf = [[V.alloc(4, 4) for mb in range(2)] for s in range(2)]
    wf = [[V.alloc(4, 4) for t in range(nseg)] for s in range(2)]
    xa = [[V.alloc() for kk in range(4)] for r in range(nreg)]
    wa = [V.alloc() for r in range(nreg)]
    gx = [V.alloc() for q in range(nx)]
    gw = [V.alloc() for q in range(nw)]
    t0 = V.alloc(); t1 = V.alloc(); t2 = V.alloc(); t3 = V.alloc(); lane = V.alloc()
    tmp = V.alloc(8, 4)
    SX = 8; SW = 12; SO = 16
    s_w = 20; s_mt = 21; s_j = 22; s_kx = 23; s_kw = 24; s_t = 25; s_ldsw = 26; s_wm = 27; s_wn = 28; s_c = 29

    a(f".globl {name}\n.p2align 8\n.type {name},@function\n{name}:")
    a(f"s_cmp_ge_u32 s2, 256\ns_cbranch_scc1 L_{name}_end")
    stp = Stamper(a); stp.stamp(True); stp.stamp()
    st2 = Stamper2(a, 200, 0 if mode == "qkv" else 2); st2.stamp()
    a(f"v_lshrrev_b32 v{t0}, 6, v0")
    a(f"v_readfirstlane_b32 s{s_w}, v{t0}")
    a(f"s_cmp_ge_u32 s{s_w}, 4\ns_cbranch_scc1 L_{name}_help")
    if mode == "qkv":
        a("s_load_dwordx4 s[4:7], s[0:1], 48")
        a("s_load_dwordx2 s[30:31], s[0:1], 88")
    else:
        a("s_load_dwordx2 s[4:5], s[0:1], 88")
        a("s_load_dwordx2 s[6:7], s[0:1], 64")
        a("s_load_dwordx2 s[30:31], s[0:1], 72")
    a(f"v_and_b32 v{lane}, 63, v0")
    a(f"s_and_b32 s{s_mt}, s2, 1\ns_lshl_b32 s{s_mt}, s{s_mt}, 3\ns_bfe_u32 s{s_t}, s2, 0x30003\ns_add_u32 s{s_mt}, s{s_mt}, s{s_t}")
    a(f"s_bfe_u32 s{s_j}, s2, 0x20001\ns_lshl_b32 s{s_j}, s{s_j}, 2\ns_lshr_b32 s{s_t}, s2, 6\ns_add_u32 s{s_j}, s{s_j}, s{s_t}")
    a(f"s_and_b32 s{s_wm}, s{s_w}, 1\ns_lshr_b32 s{s_wn}, s{s_w}, 1")
    a("s_waitcnt lgkmcnt(0)")
    if mode == "qkv":
        srd(a, SX, 4, 4 << 20); srd(a, SW, 6, 6 << 20); srd(a, SO, 30, 12 << 20)
    else:
        srd(a, SX, 4, 4 << 20, WS_O); srd(a, SW, 6, 2 << 20); srd(a, SO, 30, 8 << 20)
    a(f"v_lshrrev_b32 v{t0}, 3, v{lane}")
    a(f"v_lshrrev_b32 v{t1}, 4, v{lane}")
    a(f"v_and_b32 v{t2}, 7, v{lane}")
    a(f"v_xor_b32 v{t2}, v{t2}, v{t1}")
    a(f"s_lshl_b32 s{s_t}, s{s_mt}, 7\ns_lshl_b32 s{s_c}, s{s_w}, 5\ns_add_u32 s{s_t}, s{s_t}, s{s_c}")
    a(f"v_add_u32 v{t0}, s{s_t}, v{t0}")
    a(f"v_lshlrev_b32 v{t0}, 11, v{t0}")
    for qq in range(nx):
        if qq & 1: a(f"v_xor_b32 v{t3}, 4, v{t2}")
        else: a(f"v_mov_b32 v{t3}, v{t2}")
        a(f"v_lshl_add_u32 v{gx[qq]}, v{t3}, 4, v{t0}")
        if qq: a(f"v_add_u32 v{gx[qq]}, {qq*8*2048}, v{gx[qq]}")
    a(f"v_lshrrev_b32 v{t0}, 3, v{lane}")
    a(f"s_lshl_b32 s{s_t}, s{s_w}, 4")
    a(f"v_add_u32 v{t0}, s{s_t}, v{t0}")
    a(f"s_mov_b32 s{s_c}, {ldw}")
    a(f"v_mul_lo_u32 v{t0}, v{t0}, s{s_c}")
    a(f"v_and_b32 v{t1}, 1, v{t1}")
    a(f"v_lshlrev_b32 v{t1}, 2, v{t1}")
    a(f"v_and_b32 v{t2}, 7, v{lane}")
    a(f"v_xor_b32 v{t2}, v{t2}, v{t1}")
    a(f"v_lshl_add_u32 v{t0}, v{t2}, 4, v{t0}")
    a(f"s_lshl_b32 s{s_t}, s{s_j}, 7")
    a(f"v_add_u32 v{t0}, s{s_t}, v{t0}")
    for sg in range(nseg):
        for qh in range(2):
            a(f"v_add_u32 v{gw[sg*2+qh]}, {sg*segstride + qh*8*ldw}, v{t0}")
    a(f"v_and_b32 v{t0}, 31, v{lane}")
    a(f"v_lshrrev_b32 v{t1}, 5, v{lane}")
    a(f"v_bfe_u32 v{t2}, v{lane}, 1, 3")
    a(f"v_xor_b32 v{t2}, v{t2}, v{t1}")
    a(f"s_lshl_b32 s{s_t}, s{s_wm}, 6")
    a(f"v_add_u32 v{t0}, s{s_t}, v{t0}")
    a(f"v_lshlrev_b32 v{t0}, 7, v{t0}")
    for kk in range(4):
        a(f"v_xor_b32 v{t3}, {2*kk}, v{t2}")
        a(f"v_lshl_add_u32 v{xa[0][kk]}, v{t3}, 4, v{t0}")
        for r in range(1, nreg):
            a(f"v_add_u32 v{xa[r][kk]}, {r*per_reg*SB}, v{xa[0][kk]}")
    a(f"v_lshrrev_b32 v{t0}, 5, v{lane}")
    a(f"v_lshlrev_b32 v{t0}, 3, v{t0}")
    a(f"v_bfe_u32 v{t1}, v{lane}, 2, 2")
    a(f"v_add_u32 v{t0}, v{t0}, v{t1}")
    a(f"v_lshlrev_b32 v{t0}, 7, v{t0}")
    a(f"v_lshrrev_b32 v{t1}, 1, v{t1}")
    a(f"v_xor_b32 v{t1}, s{s_wn}, v{t1}")
    a(f"v_lshl_add_u32 v{t0}, v{t1}, 6, v{t0}")
    a(f"v_bfe_u32 v{t1}, v{lane}, 4, 1")
    a(f"v_lshl_add_u32 v{t0}, v{t1}, 5, v{t0}")
    a(f"v_and_b32 v{t1}, 3, v{lane}")
    a(f"v_lshl_add_u32 v{t0}, v{t1}, 3, v{t0}")
    a(f"v_add_u32 v{wa[0]}, {XB}, v{t0}")
    for r in range(1, nreg):
        a(f"v_add_u32 v{wa[r]}, {r*per_reg*SB}, v{wa[0]}")
    for mb in range(2):
        for t in range(nseg):
            for i in range(16): a(f"v_mov_b32 v{acc[mb][t]+i}, 0")
    a(f"s_lshl_b32 s{s_ldsw}, s{s_w}, 12")
    a(f"s_lshl_b32 s{s_c}, s{s_w}, 11")
    a(f"s_mov_b32 s{s_kx}, 0\ns_mov_b32 s{s_kw}, 0")

    def dma_list(st):
        b = (st % NB) * SB
        L = []
        for qq in range(nx):
            L.append((f"s_add_u32 m0, s{s_ldsw}, {b + qq*1024}", f"buffer_load_dwordx4 v{gx[qq]}, s[{SX}:{SX+3}], s{s_kx} offen lds"))
        for sg in range(nseg):
            for qh in range(2):
                L.append((f"s_add_u32 m0, s{s_c}, {b + XB + sg*8192 + qh*1024}", f"buffer_load_dwordx4 v{gw[sg*2+qh]}, s[{SW}:{SW+3}], s{s_kw} offen lds"))
        return L
    def adv():
        return [f"s_add_u32 s{s_kx}, s{s_kx}, 128", f"s_add_u32 s{s_kw}, s{s_kw}, {64*ldw}"]
    def reads(st, kk, fs):
        b = st % NB; r = b // per_reg; off = (b % per_reg) * SB
        L = []
        for mb in range(2):
            L.append(f"ds_read_b128 {vr(xf[fs][mb],4)}, v{xa[r][kk]} offset:{off + mb*4096}")
        for t in range(nseg):
            for p in range(2):
                L.append(f"ds_read_b64_tr_b16 {vr(wf[fs][t]+2*p,2)}, v{wa[r]} offset:{off + t*8192 + (16*kk+4*p)*128}")
        return L
    def mfmas(fs):
        L = []
        for t in range(nseg):
            for mb in range(2):
                A, B = (wf[fs][t], xf[fs][mb])
                if mode == "qkv" and t == 2: A, B = B, A
                L.append(f"v_mfma_f32_32x32x16_bf16 {vr(acc[mb][t],16)}, {vr(A,4)}, {vr(B,4)}, {vr(acc[mb][t],16)}")
        return L

    for st in range(NB):
        for m, l in dma_list(st):
            a(m); a("s_nop 0"); a(l)
        for x in adv(): a(x)
    a(f"s_waitcnt vmcnt({(NB-1)*D})")
    a("s_barrier")
    stp.stamp()
    for x in reads(0, 0, 0): a(x)
    pend = []
    fs = 0
    for st in range(NST):
        for kk in range(4):
            a("s_waitcnt lgkmcnt(0)")
            rd = []
            if kk < 3:
                rd = reads(st, kk + 1, fs ^ 1)
            elif st + 1 < NST:
                assert not pend
                later = min(st + NB - 1, NST - 1) - (st + 1)
                st2.stamp()
                a(f"s_waitcnt vmcnt({later*D})")
                st2.stamp()
                a("s_barrier")
                st2.stamp()
                rd = reads(st + 1, 0, fs ^ 1)
                if st + NB < NST:
                    for m, l in dma_list(st + NB): pend += [m, l]
                    pend += adv()
            mf = mfmas(fs)
            quota = {3: 3, 0: 3, 1: 3, 2: 99}[kk] if nseg == 3 else {3: 2, 0: 2, 1: 2, 2: 99}[kk]
            done = 0
            for i, m in enumerate(mf):
                a(m)
                for _ in range(2 if nseg == 3 else 2):
                    if rd: a(rd.pop(0))
                if not rd and pend and done < quota:
                    a(pend.pop(0))
                    if pend and pend[0].startswith("buffer"):
                        a(pend.pop(0)); done += 1
            while rd: a(rd.pop(0))
            while pend and done < quota:
                x = pend.pop(0); a(x)
                if x.startswith("buffer"): done += 1
            if kk == 2:
                while pend: a(pend.pop(0))
            fs ^= 1
    stp.stamp()
    a("s_nop 15")
    if mode == "qkv":
        a(f"s_lshl_b32 s{s_t}, s{s_j}, 1\ns_add_u32 s{s_t}, s{s_t}, s{s_wn}\ns_lshl_b32 s{s_t}, s{s_t}, 17")
        a(f"s_lshl_b32 s{s_c}, s{s_mt}, 1\ns_add_u32 s{s_c}, s{s_c}, s{s_wm}\ns_lshl_b32 s{s_c}, s{s_c}, 12\ns_add_u32 s{s_t}, s{s_t}, s{s_c}")
        a(f"v_and_b32 v{t0}, 31, v{lane}")
        a(f"v_lshrrev_b32 v{t1}, 5, v{lane}")
        a(f"v_lshlrev_b32 v{t1}, 4, v{t1}")
        a(f"v_lshl_add_u32 v{t2}, v{t0}, 6, v{t1}")
        a(f"v_add_u32 v{t2}, s{s_t}, v{t2}")
        a(f"v_lshl_add_u32 v{t3}, v{t0}, 7, v{t1}")
        a(f"v_add_u32 v{t3}, s{s_t}, v{t3}")
        a(f"v_add_u32 v{t3}, {WS_V}, v{t3}")
        a(f"v_add_u32 v{t0}, {WS_K}, v{t2}")
        a(f"s_mov_b32 s{s_c}, {f2u(QSCALE)}")
    else:
        a(f"s_lshl_b32 s{s_t}, s{s_mt}, 1\ns_add_u32 s{s_t}, s{s_t}, s{s_wm}\ns_lshl_b32 s{s_t}, s{s_t}, 18")
        a(f"s_lshl_b32 s{s_c}, s{s_j}, 1\ns_add_u32 s{s_c}, s{s_c}, s{s_wn}\ns_lshl_b32 s{s_c}, s{s_c}, 6\ns_add_u32 s{s_t}, s{s_t}, s{s_c}\ns_add_u32 s{s_t}, s{s_t}, 2048")
        a(f"v_and_b32 v{t0}, 31, v{lane}")
        a(f"v_lshrrev_b32 v{t1}, 5, v{lane}")
        a(f"v_lshlrev_b32 v{t1}, 4, v{t1}")
        a(f"v_lshl_add_u32 v{t2}, v{t0}, 12, v{t1}")
        a(f"v_add_u32 v{t2}, s{s_t}, v{t2}")
        a(f"v_add_u32 v{t3}, {32*4096}, v{t2}")
    for mb in range(2):
        for t in range(nseg):
            A = acc[mb][t]
            if mode == "qkv" and t == 0:
                for i in range(16): a(f"v_mul_f32 v{A+i}, s{s_c}, v{A+i}")
            for i in range(8):
                a(f"v_cvt_pk_bf16_f32 v{A+i}, v{A+2*i}, v{A+2*i+1}")
            for pr in range(2):
                b = A + 4 * pr
                a(f"v_permlane32_swap_b32 v{b}, v{b+2}")
                a(f"v_permlane32_swap_b32 v{b+1}, v{b+3}")
            for pr in range(2):
                b = A + 4 * pr
                if mode == "qkv":
                    if t < 2:
                        a(f"buffer_store_dwordx4 {vr(b,4)}, v{t2 if t == 0 else t0}, s[{SO}:{SO+3}], 0 offen offset:{mb*2048 + pr*32}")
                    else:
                        a(f"buffer_store_dwordx4 {vr(b,4)}, v{t3}, s[{SO}:{SO+3}], 0 offen offset:{mb*64 + pr*32}")
                else:
                    a(f"buffer_store_dwordx4 {vr(b,4)}, v{t2 if mb == 0 else t3}, s[{SO}:{SO+3}], 0 offen offset:{pr*32}")
    if asmlib.STAMPS: a("s_waitcnt vmcnt(0)")
    stp.stamp(); stp.stamp(True)
    stp.dump(name, 37)
    st2.stamp(); st2.dump(name + "g")
    a(f"L_{name}_end:")
    a("s_endpgm")
    a(f"L_{name}_help:")
    a(f"s_sub_u32 s3, s{s_w}, 4")
    V2 = Regs(1)
    if mode == "qkv": helper1(a, V2, 3, hb[0], hb[1], NB * SB)
    else: helper3(a, V2, 3, hb[0], hb[1], NB * SB)
    if asmlib.STAMPS:
        i0 = a.lines.index(f"L_{name}_help:")
        tail = a.lines[i0:]; a.lines = a.lines[:i0]
        for l in tail:
            if l == "s_barrier":
                st2.stamp(); a(l); st2.stamp()
            else: a(l)
        a("s_waitcnt vmcnt(0)")
        st2.stamp(); st2.dump(name + "h")
    a("s_endpgm")
    lines, n = pad_hazards(a.lines)
    return lines, (201 if asmlib.STAMPS else max(V.n, V2.n)), 102, NB * SB + (32768 if mode == "qkv" else 16384)
```

```python
from asmlib import *
import asmlib
from helpers import helper1, helper3, srd
from gemm import WS_Q, WS_K, WS_V, WS_O, QSCALE, f2u

class VMT:
    def __init__(self, a): self.a = a; self.ops = []
    def emit(self, text, tag=None):
        self.a(text)
        if text.startswith(("buffer_", "global_")): self.ops.append(tag)
    def cnt(self, tag):
        idx = max(i for i, t in enumerate(self.ops) if t == tag)
        return min(63, len(self.ops) - 1 - idx)

def gen_gemm(name, mode, opt=None):
    opt = opt or {}
    a = Asm()
    nseg = 3 if mode == "qkv" else 1
    ldw = 6144 if mode == "qkv" else 2048
    segstride = 2048
    XB = 16384; WB = 8192 * nseg; SB = XB + WB
    NB = opt.get("NB", 3 if mode == "qkv" else 5)
    NST = 16
    nx = 4; nw = 2 * nseg; D = nx + nw
    per_reg = 65536 // SB
    nreg = (NB + per_reg - 1) // per_reg
    L0 = opt.get("L0", -1)
    C0 = opt.get("C0", 7 if mode == "qkv" else 7)
    LATE = opt.get("LATE", 12 if mode == "qkv" else 11)
    MW = opt.get("MW", 3 if mode == "qkv" else 1)
    MS = opt.get("MS", 2 if mode == "qkv" else 1)
    FL = opt.get("FL", 1 if mode == "qkv" else 2)
    FC = opt.get("FC", 4 if mode == "qkv" else 5)
    use_help = opt.get("help", True)

    V = Regs(1)
    acc = [[16 * (mb * nseg + t) for t in range(nseg)] for mb in range(2)]
    nacc = 32 * nseg
    xf = [[V.alloc(4, 4) for mb in range(2)] for s in range(2)]
    wf = [[V.alloc(4, 4) for t in range(nseg)] for s in range(2)]
    xa = [[V.alloc() for kk in range(4)] for r in range(nreg)]
    wa = [V.alloc() for r in range(nreg)]
    gx = [V.alloc() for q in range(nx)]
    gw = [V.alloc() for q in range(nw)]
    t0 = V.alloc(); t1 = V.alloc(); t2 = V.alloc(); t3 = V.alloc(); lane = V.alloc()
    ep = V.alloc(32, 4)
    SX = 8; SW = 12; SO = 16
    s_w = 20; s_mt = 21; s_j = 22; s_kx = 23; s_kw = 24; s_t = 25; s_ldsw = 26; s_wm = 27; s_wn = 28; s_c = 29
    vm = VMT(a)
    H = Asm()
    if use_help:
        (helper1 if mode == "qkv" else helper3)(H, V, s_w, NB * SB)
    hl = H.lines
    def cut(mark):
        nonlocal hl
        if mark not in hl: return []
        i = hl.index(mark); r = hl[:i]; hl = hl[i + 1:]; return r
    h_pre = cut("@SETUP"); h_setup = cut("@LOADS"); h_loads = cut("@COMPUTE"); h_comp = hl

    a(f".globl {name}\n.p2align 8\n.type {name},@function\n{name}:")
    a(f"s_cmp_ge_u32 s2, 256\ns_cbranch_scc1 L_{name}_end")
    st2 = Stamper2(a, 250, 0 if mode == "qkv" else 2); st2.stamp()
    if mode == "qkv":
        a("s_load_dwordx4 s[4:7], s[0:1], 48")
        a("s_load_dwordx2 s[30:31], s[0:1], 88")
    else:
        a("s_load_dwordx2 s[4:5], s[0:1], 88")
        a("s_load_dwordx2 s[6:7], s[0:1], 64")
        a("s_load_dwordx2 s[30:31], s[0:1], 72")
    a(f"v_lshrrev_b32 v{t0}, 6, v0")
    a(f"v_and_b32 v{lane}, 63, v0")
    a(f"v_readfirstlane_b32 s{s_w}, v{t0}")
    for x in h_pre: a(x)
    a(f"s_and_b32 s{s_mt}, s2, 1\ns_lshl_b32 s{s_mt}, s{s_mt}, 3\ns_bfe_u32 s{s_t}, s2, 0x30003\ns_add_u32 s{s_mt}, s{s_mt}, s{s_t}")
    a(f"s_bfe_u32 s{s_j}, s2, 0x20001\ns_lshl_b32 s{s_j}, s{s_j}, 2\ns_lshr_b32 s{s_t}, s2, 6\ns_add_u32 s{s_j}, s{s_j}, s{s_t}")
    a(f"s_and_b32 s{s_wm}, s{s_w}, 1\ns_lshr_b32 s{s_wn}, s{s_w}, 1")
    a(f"v_lshrrev_b32 v{t0}, 3, v{lane}")
    a(f"v_lshrrev_b32 v{t1}, 4, v{lane}")
    a(f"v_and_b32 v{t2}, 7, v{lane}")
    a(f"v_xor_b32 v{t2}, v{t2}, v{t1}")
    a(f"s_lshl_b32 s{s_t}, s{s_mt}, 7\ns_lshl_b32 s{s_c}, s{s_w}, 5\ns_add_u32 s{s_t}, s{s_t}, s{s_c}")
    a(f"v_add_u32 v{t0}, s{s_t}, v{t0}")
    a(f"v_lshlrev_b32 v{t0}, 11, v{t0}")
    for qq in range(nx):
        if qq & 1: a(f"v_xor_b32 v{t3}, 4, v{t2}")
        else: a(f"v_mov_b32 v{t3}, v{t2}")
        a(f"v_lshl_add_u32 v{gx[qq]}, v{t3}, 4, v{t0}")
        if qq: a(f"v_add_u32 v{gx[qq]}, {qq*8*2048}, v{gx[qq]}")
    a(f"v_lshrrev_b32 v{t0}, 3, v{lane}")
    a(f"s_lshl_b32 s{s_t}, s{s_w}, 4")
    a(f"v_add_u32 v{t0}, s{s_t}, v{t0}")
    a(f"v_mul_u32_u24 v{t0}, {ldw}, v{t0}")
    a(f"v_and_b32 v{t1}, 1, v{t1}")
    a(f"v_lshlrev_b32 v{t1}, 2, v{t1}")
    a(f"v_and_b32 v{t2}, 7, v{lane}")
    a(f"v_xor_b32 v{t2}, v{t2}, v{t1}")
    a(f"v_lshl_add_u32 v{t0}, v{t2}, 4, v{t0}")
    a(f"s_lshl_b32 s{s_t}, s{s_j}, 7")
    a(f"v_add_u32 v{t0}, s{s_t}, v{t0}")
    for sg in range(nseg):
        for qh in range(2):
            a(f"v_add_u32 v{gw[sg*2+qh]}, {sg*segstride + qh*8*ldw}, v{t0}")
    a(f"s_lshl_b32 s{s_ldsw}, s{s_w}, 12")
    a(f"s_lshl_b32 s{s_c}, s{s_w}, 11")
    a(f"s_mov_b32 s{s_kx}, 0\ns_mov_b32 s{s_kw}, 0")
    st2.stamp()
    a("s_waitcnt lgkmcnt(0)")
    st2.stamp()
    if mode == "qkv":
        srd(a, SX, 4, 4 << 20); srd(a, SW, 6, 6 << 20)
    else:
        srd(a, SX, 4, 4 << 20, WS_O); srd(a, SW, 6, 2 << 20)

    def dma_list(st):
        b = (st % NB) * SB
        L = []
        for qq in range(nx):
            L.append((f"s_add_u32 m0, s{s_ldsw}, {b + qq*1024}", f"buffer_load_dwordx4 v{gx[qq]}, s[{SX}:{SX+3}], s{s_kx} offen lds"))
        for sg in range(nseg):
            for qh in range(2):
                L.append((f"s_add_u32 m0, s{s_c}, {b + XB + sg*8192 + qh*1024}", f"buffer_load_dwordx4 v{gw[sg*2+qh]}, s[{SW}:{SW+3}], s{s_kw} offen lds"))
        return L
    def adv():
        return [f"s_add_u32 s{s_kx}, s{s_kx}, 128", f"s_add_u32 s{s_kw}, s{s_kw}, {64*ldw}"]
    PRE = opt.get("PRE", 2)
    HR = opt.get("HR", 2); HS = opt.get("HS", 0)
    pend = []; hq = []
    for st in range(NB):
        if st < 1:
            for m, l in dma_list(st):
                a(m); vm.emit(l, f"d{st}")
            for x in adv(): a(x)
        elif st >= PRE:
            for m, l in dma_list(st): pend.append((m, l, f"d{st}"))
            pend.append(None)
    if mode == "qkv": srd(a, SO, 30, 12 << 20)
    else: srd(a, SO, 30, 8 << 20)
    a(f"v_and_b32 v{t0}, 31, v{lane}")
    a(f"v_lshrrev_b32 v{t1}, 5, v{lane}")
    a(f"v_bfe_u32 v{t2}, v{lane}, 1, 3")
    a(f"v_xor_b32 v{t2}, v{t2}, v{t1}")
    a(f"s_lshl_b32 s{s_t}, s{s_wm}, 6")
    a(f"v_add_u32 v{t0}, s{s_t}, v{t0}")
    a(f"v_lshlrev_b32 v{t0}, 7, v{t0}")
    for kk in range(4):
        a(f"v_xor_b32 v{t3}, {2*kk}, v{t2}")
        a(f"v_lshl_add_u32 v{xa[0][kk]}, v{t3}, 4, v{t0}")
        for r in range(1, nreg):
            a(f"v_add_u32 v{xa[r][kk]}, {r*per_reg*SB}, v{xa[0][kk]}")
    a(f"v_lshrrev_b32 v{t0}, 5, v{lane}")
    a(f"v_lshlrev_b32 v{t0}, 3, v{t0}")
    a(f"v_bfe_u32 v{t1}, v{lane}, 2, 2")
    a(f"v_add_u32 v{t0}, v{t0}, v{t1}")
    a(f"v_lshlrev_b32 v{t0}, 7, v{t0}")
    a(f"v_lshrrev_b32 v{t1}, 1, v{t1}")
    a(f"v_xor_b32 v{t1}, s{s_wn}, v{t1}")
    a(f"v_lshl_add_u32 v{t0}, v{t1}, 6, v{t0}")
    a(f"v_bfe_u32 v{t1}, v{lane}, 4, 1")
    a(f"v_lshl_add_u32 v{t0}, v{t1}, 5, v{t0}")
    a(f"v_and_b32 v{t1}, 3, v{lane}")
    a(f"v_lshl_add_u32 v{t0}, v{t1}, 3, v{t0}")
    a(f"v_add_u32 v{wa[0]}, {XB}, v{t0}")
    for r in range(1, nreg):
        a(f"v_add_u32 v{wa[r]}, {r*per_reg*SB}, v{wa[0]}")
    for i in range(nacc): a(f"v_accvgpr_write_b32 a{i}, 0")
    for st in range(1, PRE):
        for m, l in dma_list(st):
            a(m); vm.emit(l, f"d{st}")
        for x in adv(): a(x)
    for x in h_setup: a(x)
    if L0 < 0:
        i = 0
        while i < len(h_loads):
            x = h_loads[i]
            if x.startswith("s_add_u32 m0"):
                hq.append((x, h_loads[i + 1], "h")); i += 2
            elif x.startswith("buffer"):
                hq.append(("s_nop 0", x, "h")); i += 1
            else:
                hq.append(("raw", x)); i += 1
        h_loads = []

    def reads(st, kk, fs):
        b = st % NB; r = b // per_reg; off = (b % per_reg) * SB
        L = []
        for mb in range(2):
            L.append(f"ds_read_b128 {vr(xf[fs][mb],4)}, v{xa[r][kk]} offset:{off + mb*4096}")
        for t in range(nseg):
            for p in range(2):
                L.append(f"ds_read_b64_tr_b16 {vr(wf[fs][t]+2*p,2)}, v{wa[r]} offset:{off + t*8192 + (16*kk+4*p)*128}")
        return L
    def mfmas(fs):
        L = []
        for t in range(nseg):
            for mb in range(2):
                A, B = (wf[fs][t], xf[fs][mb])
                if mode == "qkv" and t == 2: A, B = B, A
                L.append(f"v_mfma_f32_32x32x16_bf16 {ar(acc[mb][t],16)}, {vr(A,4)}, {vr(B,4)}, {ar(acc[mb][t],16)}")
        return L
    state = {"gap": False, "waited": False}
    def fill(st, n):
        k = 0
        if state.get("cool", 0) > 0 and n < 100:
            state["cool"] -= 1; return
        while k < n:
            if h_loads and st >= L0:
                x = h_loads.pop(0)
                vm.emit(x, "h")
                if x.startswith("s_add_u32 m0"):
                    vm.emit(h_loads.pop(0), "h")
                if x.startswith(("buffer", "s_add_u32 m0")): k += max(1, n // FL if FL < n else 1)
                continue
            if not h_loads and h_comp and st >= C0 and not state["gap"] and not hq and not any(x and x[-1] == "h" for x in pend):
                if not state["waited"]:
                    a(f"s_waitcnt vmcnt({vm.cnt('h')})"); state["waited"] = True
                x = h_comp.pop(0)
                if x == "@GAP": state["gap"] = True; return
                if x == "@LATE":
                    if st < LATE: h_comp.insert(0, x); return
                    continue
                vm.emit(x, "hs"); k += 1
                if n < 100:
                    if x.startswith(("ds_write_b128", "buffer_store", "ds_read_b128")):
                        state["cool"] = MW - 1; return
                    if x.startswith("ds_"): k += MS
                continue
            return

    st2.stamp()
    a(f"s_waitcnt vmcnt({vm.cnt('d0')})")
    a("s_barrier")
    st2.stamp()
    for x in reads(0, 0, 0): a(x)
    fs = 0
    def one_dma():
        x = pend.pop(0)
        if x is None:
            for y in adv(): a(y)
            return 0
        if x[0] == "raw":
            a(x[1]); return 0
        a(x[0]); vm.emit(x[1], x[2]); return 1
    for st in range(NST):
        for kk in range(4):
            a("s_waitcnt lgkmcnt(0)")
            if st in opt.get("fine", ()): st2.stamp()
            state["gap"] = False
            if kk == 1 and st >= HS:
                k = 0
                while hq and (k < HR or hq[0][0] == "raw"):
                    x = hq.pop(0); pend.append(x)
                    if x[0] != "raw": k += 1
            rd = []
            if kk < 3:
                rd = reads(st, kk + 1, fs ^ 1)
            elif st + 1 < NST:
                while any(x and x[-1] == f"d{st+1}" for x in pend): one_dma()
                st2.stamp()
                a(f"s_waitcnt vmcnt({vm.cnt(f'd{st+1}')})")
                a("s_barrier")
                st2.stamp()
                rd = reads(st + 1, 0, fs ^ 1)
                if st + NB < NST:
                    for m, l in dma_list(st + NB): pend.append((m, l, f"d{st+NB}"))
                    pend.append(None)
            mf = mfmas(fs)
            quota = opt.get("Q", 3 if nseg == 3 else 2)
            done = 0
            for i, m in enumerate(mf):
                a(m)
                for _ in range(2):
                    if rd: a(rd.pop(0))
                if not rd and pend and done < quota: done += one_dma()
                fill(st, FC)
            while rd: a(rd.pop(0))
            while pend and (done < quota or pend[0] is None or pend[0][0] == "raw"): done += one_dma()
            fs ^= 1
    st2.stamp()
    while h_loads or h_comp:
        state["gap"] = False
        a("s_waitcnt lgkmcnt(0)")
        fill(99, 1000)
    if mode == "qkv" and opt.get("ldsep", True):
        a(f"s_lshl_b32 s{s_t}, s{s_j}, 1\ns_add_u32 s{s_t}, s{s_t}, s{s_wn}\ns_lshl_b32 s{s_t}, s{s_t}, 17")
        a(f"s_lshl_b32 s{s_c}, s{s_mt}, 1\ns_add_u32 s{s_c}, s{s_c}, s{s_wm}\ns_lshl_b32 s{s_c}, s{s_c}, 12\ns_add_u32 s{s_t}, s{s_t}, s{s_c}")
        a(f"s_mul_i32 s{s_kx}, s{s_w}, 12288\ns_add_u32 s{s_kx}, s{s_kx}, {SB}")
        wq, wv_, rq, rv, ga = gx[0], gx[1], gx[2], gx[3], gw[0]
        a(f"v_and_b32 v{t0}, 31, v{lane}")
        a(f"v_lshrrev_b32 v{t1}, 5, v{lane}")
        a(f"v_bfe_u32 v{t2}, v{lane}, 1, 2")
        a(f"v_xor_b32 v{t2}, v{t2}, v{t1}")
        a(f"v_lshlrev_b32 v{wq}, 6, v{t0}")
        a(f"v_lshl_add_u32 v{wq}, v{t2}, 4, v{wq}")
        a(f"v_add_u32 v{wq}, s{s_kx}, v{wq}")
        a(f"v_and_b32 v{t2}, 7, v{lane}")
        a(f"v_xor_b32 v{t2}, v{t2}, v{t1}")
        a(f"v_lshlrev_b32 v{wv_}, 7, v{t0}")
        a(f"v_lshl_add_u32 v{wv_}, v{t2}, 4, v{wv_}")
        a(f"v_add_u32 v{wv_}, s{s_kx}, v{wv_}")
        a(f"v_bfe_u32 v{t2}, v{lane}, 3, 2")
        a(f"v_lshlrev_b32 v{t2}, 4, v{t2}")
        a(f"v_lshlrev_b32 v{ga}, 4, v{lane}")
        a(f"v_xor_b32 v{rq}, v{ga}, v{t2}")
        a(f"v_add_u32 v{rq}, s{s_kx}, v{rq}")
        a(f"v_lshrrev_b32 v{t2}, 3, v{lane}")
        a(f"v_lshlrev_b32 v{t2}, 4, v{t2}")
        a(f"v_xor_b32 v{rv}, v{ga}, v{t2}")
        a(f"v_add_u32 v{rv}, s{s_kx}, v{rv}")
        a(f"v_add_u32 v{ga}, s{s_t}, v{ga}")
        a(f"s_mov_b32 s{s_c}, {f2u(QSCALE)}")
        a(f"s_mov_b32 s{s_kw}, 0")
        rb = [xf[0][0], xf[1][0]]
        tmp = [xf[0][0], xf[0][1], xf[1][0], xf[1][1]]
        cnt = 0
        for t in range(nseg):
            for mb in range(2):
                A = ep + 16 * (cnt & 1); cnt += 1
                for i in range(16): a(f"v_accvgpr_read_b32 v{A+i}, a{acc[mb][t]+i}")
                if t == 0:
                    for i in range(16): a(f"v_mul_f32 v{A+i}, s{s_c}, v{A+i}")
                for i in range(8): a(f"v_cvt_pk_bf16_f32 v{A+i}, v{A+2*i}, v{A+2*i+1}")
                for pr in range(2):
                    b = A + 4 * pr
                    a(f"v_permlane32_swap_b32 v{b}, v{b+2}")
                    a(f"v_permlane32_swap_b32 v{b+1}, v{b+3}")
                for pr in range(2):
                    b = A + 4 * pr
                    if pr: a(f"v_xor_b32 v{t3}, 32, v{wq}")
                    a(f"ds_write_b128 v{t3 if pr else wq}, {vr(b,4)} offset:{t*4096 + mb*2048}")
            a("s_waitcnt lgkmcnt(0)")
            for j in range(4):
                a(f"ds_read_b128 {vr(tmp[j],4)}, v{rq} offset:{t*4096 + 1024*j}")
            for j in range(4):
                a(f"s_waitcnt lgkmcnt({3-j})")
                a(f"buffer_store_dwordx4 {vr(tmp[j],4)}, v{ga}, s[{SO}:{SO+3}], s{s_kw} offen offset:{1024*j}")
            a(f"s_add_u32 s{s_kw}, s{s_kw}, {4 << 20}")
    else:
        if mode == "qkv":
            a(f"s_lshl_b32 s{s_t}, s{s_j}, 1\ns_add_u32 s{s_t}, s{s_t}, s{s_wn}\ns_lshl_b32 s{s_t}, s{s_t}, 17")
            a(f"s_lshl_b32 s{s_c}, s{s_mt}, 1\ns_add_u32 s{s_c}, s{s_c}, s{s_wm}\ns_lshl_b32 s{s_c}, s{s_c}, 12\ns_add_u32 s{s_t}, s{s_t}, s{s_c}")
            a(f"v_and_b32 v{t0}, 31, v{lane}")
            a(f"v_lshrrev_b32 v{t1}, 5, v{lane}")
            a(f"v_lshlrev_b32 v{t1}, 4, v{t1}")
            a(f"v_lshl_add_u32 v{t2}, v{t0}, 6, v{t1}")
            a(f"v_add_u32 v{t2}, s{s_t}, v{t2}")
            a(f"v_lshl_add_u32 v{t3}, v{t0}, 7, v{t1}")
            a(f"v_add_u32 v{t3}, s{s_t}, v{t3}")
            a(f"v_add_u32 v{t3}, {WS_V}, v{t3}")
            a(f"v_add_u32 v{t0}, {WS_K}, v{t2}")
            a(f"s_mov_b32 s{s_c}, {f2u(QSCALE)}")
        else:
            a(f"s_lshl_b32 s{s_t}, s{s_mt}, 1\ns_add_u32 s{s_t}, s{s_t}, s{s_wm}\ns_lshl_b32 s{s_t}, s{s_t}, 18")
            a(f"s_lshl_b32 s{s_c}, s{s_j}, 1\ns_add_u32 s{s_c}, s{s_c}, s{s_wn}\ns_lshl_b32 s{s_c}, s{s_c}, 6\ns_add_u32 s{s_t}, s{s_t}, s{s_c}\ns_add_u32 s{s_t}, s{s_t}, 2048")
            a(f"v_and_b32 v{t0}, 31, v{lane}")
            a(f"v_lshrrev_b32 v{t1}, 5, v{lane}")
            a(f"v_lshlrev_b32 v{t1}, 4, v{t1}")
            a(f"v_lshl_add_u32 v{t2}, v{t0}, 12, v{t1}")
            a(f"v_add_u32 v{t2}, s{s_t}, v{t2}")
            a(f"v_add_u32 v{t3}, {32*4096}, v{t2}")
        cnt = 0
        for t in range(nseg):
            for mb in range(2):
                A = ep + 16 * (cnt & 1); cnt += 1
                for i in range(16): a(f"v_accvgpr_read_b32 v{A+i}, a{acc[mb][t]+i}")
                if mode == "qkv" and t == 0:
                    for i in range(16): a(f"v_mul_f32 v{A+i}, s{s_c}, v{A+i}")
                for i in range(8):
                    a(f"v_cvt_pk_bf16_f32 v{A+i}, v{A+2*i}, v{A+2*i+1}")
                for pr in range(2):
                    b = A + 4 * pr
                    a(f"v_permlane32_swap_b32 v{b}, v{b+2}")
                    a(f"v_permlane32_swap_b32 v{b+1}, v{b+3}")
                for pr in range(2):
                    b = A + 4 * pr
                    if mode == "qkv":
                        if t < 2:
                            a(f"buffer_store_dwordx4 {vr(b,4)}, v{t2 if t == 0 else t0}, s[{SO}:{SO+3}], 0 offen offset:{mb*2048 + pr*32}")
                        else:
                            a(f"buffer_store_dwordx4 {vr(b,4)}, v{t3}, s[{SO}:{SO+3}], 0 offen offset:{mb*64 + pr*32}")
                    else:
                        a(f"buffer_store_dwordx4 {vr(b,4)}, v{t2 if mb == 0 else t3}, s[{SO}:{SO+3}], 0 offen offset:{pr*32}")
    if asmlib.STAMPS:
        st2.stamp(); a("s_waitcnt vmcnt(0)"); st2.stamp(); st2.dump(name + "g")
    a(f"L_{name}_end:")
    a("s_endpgm")
    lines, n = pad_hazards(a.lines)
    nv = 251 if asmlib.STAMPS else V.n
    accum = (nv + 3) // 4 * 4
    print(name, "pads", n, "arch vgprs", V.n)
    return lines, (accum + nacc, accum), 102, NB * SB + (40960 if mode == "qkv" else 32768)
```

```python
from asmlib import *

WS_Z = 16 << 20
ZCH = 9216
WS_ZO = 32 << 20

def srd(a, s, base_lo, nbytes, add=0):
    if add:
        a(f"s_add_u32 s{s}, s{base_lo}, {add}")
        a(f"s_addc_u32 s{s+1}, s{base_lo+1}, 0")
        a(f"s_and_b32 s{s+1}, s{s+1}, 0xffff")
    else:
        a(f"s_mov_b32 s{s}, s{base_lo}")
        a(f"s_and_b32 s{s+1}, s{base_lo+1}, 0xffff")
    a(f"s_mov_b32 s{s+2}, {nbytes}")
    a(f"s_mov_b32 s{s+3}, 0x20000")

def helper1(a, V, hw, lbase):
    SK = 32; SV = 36; SS = 40; SZ = 44; sp = 48
    s_rb = 56; s_c = 57; s_t = 58; s_u = 59; s_l = 60
    kr = V.alloc(20); vv = V.alloc(17); sk4 = V.alloc(4, 4); sk = V.alloc(8)
    kf = V.alloc(20); x = V.alloc(17); pk = V.alloc(32, 4)
    lane = V.alloc(); ad = V.alloc(); t0 = V.alloc(); t1 = V.alloc(); za = V.alloc(); lw = [V.alloc() for _ in range(2)]; lr = [V.alloc() for _ in range(4)]; rr = V.alloc()
    a(f"s_load_dwordx4 s[{sp}:{sp+3}], s[0:1], 8")
    a(f"s_load_dwordx2 s[{sp+4}:{sp+5}], s[0:1], 24")
    a(f"s_load_dwordx2 s[{sp+6}:{sp+7}], s[0:1], 88")
    a("@SETUP")
    a(f"v_and_b32 v{lane}, 63, v0")
    a(f"s_lshr_b32 s{s_rb}, s2, 3")
    a(f"s_and_b32 s{s_c}, s2, 7\ns_lshl_b32 s{s_c}, s{s_c}, 2\ns_add_u32 s{s_c}, s{s_c}, s{hw}\ns_lshl_b32 s{s_c}, s{s_c}, 5")
    a(f"s_mul_i32 s{s_l}, s{hw}, 10240\ns_add_u32 s{s_l}, s{s_l}, {lbase}")
    srd(a, SK, sp, 4 << 20); srd(a, SV, sp + 2, 4 << 20); srd(a, SS, sp + 4, 8192); srd(a, SZ, sp + 6, 1024 * ZCH, WS_Z)
    a(f"s_lshl_b32 s{s_t}, s{s_rb}, 17\ns_lshl_b32 s{s_u}, s{s_c}, 1\ns_add_u32 s{s_t}, s{s_t}, s{s_u}\ns_sub_u32 s{s_t}, s{s_t}, {4*2048}")
    a(f"v_and_b32 v{t0}, 3, v{lane}")
    a(f"v_lshrrev_b32 v{t1}, 2, v{lane}")
    a(f"v_lshl_add_u32 v{ad}, v{t0}, 4, s{s_t}")
    a(f"v_lshl_add_u32 v{ad}, v{t1}, 11, v{ad}")
    a(f"v_and_b32 v{t0}, 15, v{lane}")
    a(f"v_lshrrev_b32 v{t1}, 4, v{lane}")
    a(f"v_lshlrev_b32 v{rr}, 10, v{t1}")
    a(f"v_lshl_add_u32 v{rr}, v{t0}, 2, v{rr}")
    a(f"v_add_u32 v{rr}, s{s_l}, v{rr}")
    a(f"v_lshlrev_b32 v{t1}, 1, v{t1}")
    a(f"v_sub_u32 v{t1}, 6, v{t1}")
    a(f"v_and_b32 v{za}, 7, v{t0}")
    a(f"v_xor_b32 v{t1}, v{t1}, v{za}")
    a(f"v_lshlrev_b32 v{lw[0]}, 9, v{t0}")
    a(f"v_lshl_add_u32 v{lw[0]}, v{t1}, 4, v{lw[0]}")
    a(f"v_add_u32 v{lw[0]}, s{s_l}, v{lw[0]}")
    a(f"v_xor_b32 v{lw[1]}, 16, v{lw[0]}")
    a(f"v_and_b32 v{t1}, 7, v{lane}")
    a(f"v_lshrrev_b32 v{za}, 5, v{lane}")
    a(f"v_xor_b32 v{t1}, v{t1}, v{za}")
    a(f"v_lshrrev_b32 v{za}, 3, v{lane}")
    a(f"v_lshlrev_b32 v{lr[0]}, 7, v{za}")
    a(f"v_lshl_add_u32 v{lr[0]}, v{t1}, 4, v{lr[0]}")
    a(f"v_add_u32 v{lr[0]}, s{s_l}, v{lr[0]}")
    for j in range(1, 4): a(f"v_xor_b32 v{lr[j]}, {32*j}, v{lr[0]}")
    a(f"v_lshrrev_b32 v{t1}, 4, v{lane}")
    a(f"v_add_u32 v{t1}, s{s_c}, v{t1}")
    a(f"v_mul_u32_u24 v{za}, {ZCH}, v{t1}")
    a(f"v_bfe_u32 v{t1}, v{lane}, 3, 1")
    a(f"v_mul_u32_u24 v{t1}, 4608, v{t1}")
    a(f"v_add_u32 v{za}, v{za}, v{t1}")
    a(f"v_and_b32 v{t1}, 7, v{lane}")
    a(f"v_lshl_add_u32 v{za}, v{t1}, 4, v{za}")
    a(f"s_sub_u32 s{s_t}, 31, s{s_rb}\ns_mul_i32 s{s_t}, s{s_t}, 144")
    a(f"v_add_u32 v{za}, s{s_t}, v{za}")
    a(f"v_lshl_add_u32 v{t0}, v{t0}, 1, s{s_c}")
    a(f"v_lshlrev_b32 v{t0}, 3, v{t0}")
    a("@LOADS")
    a(f"buffer_load_dwordx4 {vr(sk4,4)}, v{t0}, s[{SS}:{SS+3}], 0 offen")
    for i in range(5):
        a(f"s_add_u32 m0, s{s_l}, {1024*i}")
        a(f"buffer_load_dwordx4 v{ad}, s[{SK}:{SK+3}], 0 offen lds")
        a(f"s_add_u32 m0, s{s_l}, {5120 + 1024*i}")
        a(f"buffer_load_dwordx4 v{ad}, s[{SV}:{SV+3}], 0 offen lds")
        if i < 4: a(f"v_add_u32 v{ad}, {16*2048}, v{ad}")
    a("@COMPUTE")
    for r in range(20): a(f"ds_read_b32 v{kr+r}, v{rr} offset:{64*r}")
    for r in range(17): a(f"ds_read_b32 v{vv+r}, v{rr} offset:{5120 + 64*(r+3)}")
    for i in range(4):
        a(f"v_lshlrev_b32 v{sk+2*i}, 16, v{sk4+i}")
        a(f"v_and_b32 v{sk+2*i+1}, 0xffff0000, v{sk4+i}")
    a("@GAP")
    for c in range(2):
        def unp(dst, src):
            if c: a(f"v_and_b32 v{dst}, 0xffff0000, v{src}")
            else: a(f"v_lshlrev_b32 v{dst}, 16, v{src}")
        for r in range(20): unp(kf + r, kr + r)
        for tap in range(4):
            for r in range(17):
                if tap == 0: a(f"v_mul_f32 v{x+r}, v{sk+4*c+3}, v{kf+r}")
                else: a(f"v_fmac_f32 v{x+r}, v{sk+4*c+3-tap}, v{kf+r+tap}")
        for r in range(17): unp(kf + r, vv + r)
        for r in range(17): a(f"v_mul_f32 v{x+r}, v{x+r}, v{kf+r}")
        b = pk + 16 * c
        for i in range(8):
            a(f"v_cvt_pk_bf16_f32 v{b+i}, v{x+15-2*i}, v{x+14-2*i}")
            a(f"v_cvt_pk_bf16_f32 v{b+8+i}, v{x+16-2*i}, v{x+15-2*i}")
    a("@LATE")
    for c in range(2):
        b = pk + 16 * c
        for cp in range(2):
            for h in range(2):
                a(f"ds_write_b128 v{lw[h]}, {vr(b+8*cp+4*h,4)} offset:{c*256 + cp*128}")
    a("@GAP")
    for j in range(8): a(f"ds_read_b128 {vr(pk+4*j,4)}, v{lr[j&3]} offset:{1024*j}")
    a(f"s_mov_b32 s{s_t}, 0")
    a("@GAP")
    for j in range(8):
        a(f"buffer_store_dwordx4 {vr(pk+4*j,4)}, v{za}, s[{SZ}:{SZ+3}], s{s_t} offen")
        a(f"s_add_u32 s{s_t}, s{s_t}, {4*ZCH}")

def helper3(a, V, hw, lbase):
    SQ = 32; SZ = 36; SO = 40; sp = 48
    s_rb = 56; s_c = 57; s_t = 58; s_u = 59; s_l = 60
    q = V.alloc(16, 4); z = V.alloc(16, 4)
    lane = V.alloc(); ad = V.alloc(); t0 = V.alloc(); t1 = V.alloc(); t2 = V.alloc(); za = V.alloc(); oa = V.alloc(); lr = V.alloc(); qa = V.alloc(); ln = V.alloc()
    a(f"s_load_dwordx2 s[{sp}:{sp+1}], s[0:1], 0")
    a(f"s_load_dwordx2 s[{sp+2}:{sp+3}], s[0:1], 72")
    a(f"s_load_dwordx2 s[{sp+6}:{sp+7}], s[0:1], 88")
    a("@SETUP")
    a(f"v_and_b32 v{lane}, 63, v0")
    a(f"s_lshr_b32 s{s_rb}, s2, 3")
    a(f"s_and_b32 s{s_c}, s2, 7\ns_lshl_b32 s{s_c}, s{s_c}, 2\ns_add_u32 s{s_c}, s{s_c}, s{hw}\ns_lshl_b32 s{s_c}, s{s_c}, 5")
    a(f"s_lshl_b32 s{s_l}, s{hw}, 13\ns_add_u32 s{s_l}, s{s_l}, {lbase}")
    srd(a, SQ, sp, 4 << 20); srd(a, SO, sp + 2, 8 << 20); srd(a, SZ, sp + 6, 4 << 20, WS_ZO)
    a(f"s_lshl_b32 s{s_u}, s{s_c}, 1")
    a(f"v_and_b32 v{t0}, 3, v{lane}")
    a(f"v_lshrrev_b32 v{t1}, 2, v{lane}")
    a(f"s_lshl_b32 s{s_t}, s{s_rb}, 17\ns_add_u32 s{s_t}, s{s_t}, s{s_u}")
    a(f"v_lshl_add_u32 v{ad}, v{t0}, 4, s{s_t}")
    a(f"v_lshl_add_u32 v{ad}, v{t1}, 11, v{ad}")
    a(f"s_lshl_b32 s{s_t}, s{s_rb}, 18\ns_add_u32 s{s_t}, s{s_t}, s{s_u}")
    a(f"v_lshl_add_u32 v{oa}, v{t0}, 4, s{s_t}")
    a(f"v_lshl_add_u32 v{oa}, v{t1}, 12, v{oa}")
    a(f"v_and_b32 v{t0}, 15, v{lane}")
    a(f"v_lshrrev_b32 v{t1}, 4, v{lane}")
    a(f"v_lshlrev_b32 v{lr}, 8, v{t0}")
    a(f"v_lshl_add_u32 v{lr}, v{t1}, 5, v{lr}")
    a(f"v_add_u32 v{lr}, s{s_l}, v{lr}")
    a(f"v_lshlrev_b32 v{qa}, 10, v{t1}")
    a(f"v_lshl_add_u32 v{qa}, v{t0}, 2, v{qa}")
    a(f"v_add_u32 v{qa}, s{s_l}, v{qa}")
    a(f"v_lshl_add_u32 v{ln}, v{lane}, 4, s{s_l}")
    a(f"v_lshrrev_b32 v{t1}, 3, v{lane}")
    a(f"v_add_u32 v{t1}, s{s_c}, v{t1}")
    a(f"v_lshlrev_b32 v{za}, 12, v{t1}")
    a(f"v_and_b32 v{t1}, 7, v{lane}")
    a(f"v_lshl_add_u32 v{za}, v{t1}, 4, v{za}")
    a(f"s_lshl_b32 s{s_t}, s{s_rb}, 7")
    a("@LOADS")
    for j in range(4):
        a(f"s_add_u32 m0, s{s_l}, {1024*j}")
        a(f"buffer_load_dwordx4 v{za}, s[{SZ}:{SZ+3}], s{s_t} offen lds")
        a(f"s_add_u32 s{s_t}, s{s_t}, {8*4096}")
        a(f"s_add_u32 m0, s{s_l}, {4096 + 1024*j}")
        a(f"buffer_load_dwordx4 v{ad}, s[{SQ}:{SQ+3}], 0 offen lds")
        a(f"v_add_u32 v{ad}, {16*2048}, v{ad}")
    a("@COMPUTE")
    for c in range(2):
        for h in range(2):
            a(f"ds_read_b128 {vr(z+8*c+4*h,4)}, v{lr} offset:{128*c + 16*h}")
    for r in range(16): a(f"ds_read_b32 v{q+r}, v{qa} offset:{4096 + 64*r}")
    a("@GAP")
    for r in range(16):
        for c in range(2):
            src = z + 8 * c + (r >> 1)
            d = t1 if c == 0 else t2
            if r & 1: a(f"v_and_b32 v{d}, 0xffff0000, v{src}")
            else: a(f"v_lshlrev_b32 v{d}, 16, v{src}")
            if c: a(f"v_and_b32 v{t0}, 0xffff0000, v{q+r}")
            else: a(f"v_lshlrev_b32 v{t0}, 16, v{q+r}")
            a(f"v_mul_f32 v{d}, v{d}, v{t0}")
        a(f"v_cvt_pk_bf16_f32 v{q+r}, v{t1}, v{t2}")
    a("@LATE")
    for r in range(16): a(f"ds_write_b32 v{qa}, v{q+r} offset:{4096 + 64*r}")
    a("@GAP")
    for j in range(4): a(f"ds_read_b128 {vr(z+4*j,4)}, v{ln} offset:{4096 + 1024*j}")
    a("@GAP")
    for j in range(4):
        a(f"buffer_store_dwordx4 {vr(z+4*j,4)}, v{oa}, s[{SO}:{SO+3}], 0 offen")
        if j < 3: a(f"v_add_u32 v{oa}, {16*4096}, v{oa}")
```
